```python
import torch

def _softmax(x, axis=-1):
    return torch.softmax(x, dim=axis)
def _gelu(x):
    return torch.nn.functional.gelu(x, approximate="tanh")
def _silu(x):
    return torch.nn.functional.silu(x)
def _sigmoid(x):
    return torch.sigmoid(x)
def _layernorm(x, axis=-1, eps=1e-5):
    m = x.mean(dim=axis, keepdim=True)
    v = x.var(dim=axis, keepdim=True, unbiased=False)
    return (x - m) / torch.sqrt(v + eps)
def _scatter_add(tgt, idx, src, axis=0):
    return tgt.clone().index_add_(axis, idx, src)
def _segment_sum(src, seg, n):
    out = torch.zeros((n,) + src.shape[1:], dtype=src.dtype)
    return out.index_add_(0, seg, src)
def _pad(x, pw):
    flat = tuple(v for pair in reversed(pw) for v in pair)
    return torch.nn.functional.pad(x, flat)

kernel_name = 'sequential_preLN__gqa_block_cached__geglu_ffn__decode'

def setup_inputs():

    _w = (lambda a: (lambda t: t.to(torch.bfloat16) if t.is_floating_point() else t)(torch.as_tensor(a)))
    def _A_setup():
        B, Sq, D = 4, 1, 512
        Hq, Hkv, Sk, Dh = 32, 8, 16384, 128
        assert Hq % Hkv == 0, (Hq, Hkv)
        return {
            "x": _w((lambda *s: torch.randn(*s, dtype=torch.bfloat16) * 0.05)(B, Sq, D)),
            "k_cache": _w((lambda *s: torch.randn(*s, dtype=torch.bfloat16) * 3.2)(B, Hkv, Sk, Dh)),
            "v_cache": _w((lambda *s: torch.randn(*s, dtype=torch.bfloat16) * 0.4)(B, Hkv, Sk, Dh)),
            "wq": _w((lambda *s: torch.randn(*s, dtype=torch.bfloat16) * 3.2)(D, Hq * Dh) * (D ** -0.5)),
            "wo": _w((lambda *s: torch.randn(*s, dtype=torch.bfloat16) * 0.4)(Hq * Dh, D) * ((Hq * Dh) ** -0.5)),
        }
    _A_in = _A_setup()

    def _B_setup():
        B, S, D, F = 4, 1, 512, 1792
        return {
            "x": _w((lambda *s: torch.randn(*s, dtype=torch.bfloat16) * 0.05)(B, S, D)),
            "w_gate": _w((lambda *s: torch.randn(*s, dtype=torch.bfloat16) * 0.05)(D, F)),
            "w_up": _w((lambda *s: torch.randn(*s, dtype=torch.bfloat16) * 0.05)(D, F)),
            "w_down": _w((lambda *s: torch.randn(*s, dtype=torch.bfloat16) * 0.05)(F, D)),
        }
    _B_in = _B_setup()

    return {
        "A_x": _A_in["x"],
        "A_k_cache": _A_in["k_cache"],
        "A_v_cache": _A_in["v_cache"],
        "A_wq": _A_in["wq"],
        "A_wo": _A_in["wo"],
        "B_x": _B_in["x"],
        "B_w_gate": _B_in["w_gate"],
        "B_w_up": _B_in["w_up"],
        "B_w_down": _B_in["w_down"],
    }

def reference(A_x, A_k_cache, A_v_cache, A_wq, A_wo, B_x, B_w_gate, B_w_up, B_w_down):
    def _A_ref(x, k_cache, v_cache, wq, wo):
        B, Sq, D = x.shape
        Hq, Dh = 32, 128
        Hkv = k_cache.shape[1]
        rep = Hq // Hkv
        q = (lambda x, *d: x.permute(*d))((x @ wq).reshape(B, Sq, Hq, Dh), 0, 2, 1, 3)
        k = (lambda x, n, axis: torch.repeat_interleave(x, n, dim=axis))(k_cache, rep, axis=1)
        v = (lambda x, n, axis: torch.repeat_interleave(x, n, dim=axis))(v_cache, rep, axis=1)
        scores = torch.einsum("bhqd,bhkd->bhqk", q, k) * (Dh ** -0.5)
        p = _softmax(scores, axis=-1)
        o = torch.einsum("bhqk,bhkd->bhqd", p, v)
        return (lambda x, *d: x.permute(*d))(o, 0, 2, 1, 3).reshape(B, Sq, Hq * Dh) @ wo

    def _B_ref(x, w_gate, w_up, w_down):
        return (_gelu(x @ w_gate) * (x @ w_up)) @ w_down

    x = A_x
    h = x + _A_ref(_layernorm(x, axis=-1), A_k_cache, A_v_cache, A_wq, A_wo)
    h2 = h + _B_ref(_layernorm(h, axis=-1), B_w_gate, B_w_up, B_w_down)
    return h2
```

```python
import re

TRANS = ("v_exp_f32", "v_log_f32", "v_rcp_f32", "v_rsq_f32", "v_sqrt_f32", "v_sin_f32", "v_cos_f32")

def regs_of(tok):
    tok = tok.strip()
    out = set()
    m = re.fullmatch(r"-?(?:abs\()?([vs])\[(\d+):(\d+)\]\)?", tok)
    if m:
        for i in range(int(m.group(2)), int(m.group(3)) + 1):
            out.add((m.group(1), i))
        return out
    m = re.fullmatch(r"-?(?:abs\()?([vs])(\d+)\)?", tok)
    if m:
        out.add((m.group(1), int(m.group(2))))
        return out
    if tok == "vcc":
        out.add(("s", 106)); out.add(("s", 107))
    if tok == "exec":
        out.add(("s", 126)); out.add(("s", 127))
    if tok == "m0":
        out.add(("s", 124))
    return out

class Ins:
    __slots__ = ("text", "op", "ops", "wr", "rd", "kind", "states", "srcc", "srcab")
    def __init__(self, text):
        self.text = text
        t = text.split(";")[0].strip()
        parts = t.split(None, 1)
        self.op = parts[0]
        rest = parts[1] if len(parts) > 1 else ""
        ops = [o.strip() for o in rest.split(",")] if rest else []
        clean = []
        for o in ops:
            if o.startswith("quad_perm") or re.match(r"^\d+\]", o) :
                continue
            clean.append(o.split()[0] if o else o)
        self.ops = clean
        op = self.op
        self.wr = set(); self.rd = set(); self.srcc = set(); self.srcab = set()
        self.states = 1
        if op == "s_nop":
            self.states = int(clean[0]) + 1
        if op.startswith("v_mfma"):
            self.kind = "mfma"
            self.wr = regs_of(clean[0])
            self.srcab = regs_of(clean[1]) | regs_of(clean[2])
            self.srcc = regs_of(clean[3])
            self.rd = self.srcab | self.srcc
        elif op.startswith("buffer_store") or op.startswith("global_store") or op.startswith("ds_write") or op.startswith("buffer_atomic") :
            self.kind = "mem"
            for o in clean: self.rd |= regs_of(o)
            if op.startswith("buffer_atomic") and " sc0" in t:
                self.wr = regs_of(clean[0])
        elif op.startswith("buffer_load") or op.startswith("global_load") or op.startswith("ds_read") or op.startswith("ds_bpermute") or op.startswith("ds_swizzle"):
            self.kind = "mem"
            if " lds" in t:
                for o in clean: self.rd |= regs_of(o)
            else:
                self.wr = regs_of(clean[0])
                for o in clean[1:]: self.rd |= regs_of(o)
        elif op.startswith("buffer_") :
            self.kind = "mem"
        elif op.startswith("v_"):
            self.kind = "valu"
            if op.startswith("v_permlane") and "swap" in op:
                self.wr = regs_of(clean[0]) | regs_of(clean[1])
                self.rd = set(self.wr)
            else:
                self.wr = regs_of(clean[0])
                for o in clean[1:]: self.rd |= regs_of(o)
                if op.startswith("v_fmac") or op.startswith("v_pk_fmac"):
                    self.rd |= self.wr
                if op.startswith("v_cndmask") and len(clean) == 3:
                    self.rd |= regs_of("vcc")
                if op.startswith("v_add_co") or op.startswith("v_addc_co") or op.startswith("v_sub_co"):
                    self.wr |= regs_of(clean[1])
                if "_dpp" in op:
                    self.rd |= self.wr
        elif op.startswith("s_"):
            self.kind = "salu"
            if clean and not op.startswith("s_cmp") and not op.startswith("s_waitcnt") and not op.startswith("s_cbranch") and op not in ("s_nop", "s_barrier", "s_endpgm", "s_branch", "s_sleep", "s_setprio"):
                self.wr = regs_of(clean[0])
                for o in clean[1:]: self.rd |= regs_of(o)
            else:
                for o in clean: self.rd |= regs_of(o)
        else:
            self.kind = "other"

class Asm:
    def __init__(self):
        self.lines = []
    def __call__(self, text):
        for ln in text.strip().split("\n"):
            ln = ln.strip()
            if not ln or ln.startswith(";"):
                continue
            if ln.endswith(":") or ln.startswith("."):
                self.lines.append(ln)
            else:
                self.lines.append(Ins(ln))
    def raw(self, s):
        self.lines.append(s)

    def finalize(self):
        out = []
        hist = []
        pos = 0
        def need(ins):
            n = 0
            for (p, ppos) in reversed(hist):
                dist = pos - ppos
                if dist > 24: break
                req = 0
                vw = {r for r in p.wr if r[0] == "v"}
                sw = {r for r in p.wr if r[0] == "s"}
                if p.kind == "valu":
                    if vw & ins.rd:
                        if ins.kind == "mfma": req = max(req, 2)
                        if "_dpp" in ins.op: req = max(req, 2)
                        if ins.op.startswith("v_permlane"): req = max(req, 2)
                        if ins.op.startswith("v_readlane") or ins.op.startswith("v_readfirstlane"): req = max(req, 1)
                        if p.op.startswith(TRANS): req = max(req, 1)
                    if sw & ins.rd:
                        if ins.kind == "valu": req = max(req, 2)
                        if ins.op.startswith("v_readlane") or ins.op.startswith("v_writelane"): req = max(req, 4)
                        if ins.kind == "mem": req = max(req, 5)
                        if ins.kind == "salu": req = max(req, 1)
                    if (("s",126) in sw) and ins.kind in ("valu", "mfma"): req = max(req, 5)
                if p.kind == "mfma":
                    big = "32x32" in p.op
                    if ins.kind == "mfma":
                        if p.wr & ins.srcab: req = max(req, 12 if big else 8)
                        if p.wr & ins.srcc:
                            if p.wr == ins.srcc and p.op == ins.op: req = max(req, 0)
                            else: req = max(req, 10 if big else 6)
                        if (p.wr & ins.wr) and not (p.wr == ins.srcc and p.op == ins.op):
                            req = max(req, 12 if big else 8)
                    elif ins.kind in ("valu", "mem"):
                        if p.wr & (ins.rd | ins.wr): req = max(req, 12 if big else 8)
                        if ins.kind == "valu" and (p.srcc & ins.wr): req = max(req, 7 if big else 3)
                if p.kind == "mem" and ("x4" in p.op or "x3" in p.op or "b128" in p.op or "b96" in p.op) and ("store" in p.op or "write" in p.op):
                    if ins.kind in ("valu",) and (p.rd & ins.wr): req = max(req, 2)
                    if ins.kind in ("mem",) and (p.rd & ins.wr): req = max(req, 1)
                if p.kind == "salu" and ("s",124) in p.wr and " lds" in ins.text: req = max(req, 1)
                if req > dist: n = max(n, req - dist)
            return n
        for it in self.lines:
            if isinstance(it, str):
                out.append(it)
                if it.endswith(":") and not it.endswith("_kernel:") and not it.startswith("LN_"):
                    out.append("    s_nop 7"); out.append("    s_nop 3"); pos += 12
                if it.endswith("_kernel:"):
                    hist = []
                continue
            n = need(it)
            while n > 0:
                k = min(n, 16)
                out.append(f"    s_nop {k-1}")
                pos += k; n -= k
            out.append("    " + it.text)
            pos += it.states
            hist.append((it, pos))
            if len(hist) > 64: hist = hist[-64:]
        return "\n".join(out) + "\n"
```

```python
import sys
from asmlib import Asm

NAME = "sequential_preLN__gqa_block_cached__geglu_ffn__decode"
HEADER = open("cdna_kernels/%s.s.ref" % NAME).read().split("; Override launch")[0]

WS_Q    = 0
WS_PO   = 0x10000
WS_ML   = 0x90000
WS_AO   = 0xA0000
WS_H    = 0xB0000
WS_DP   = 0xC0000
WS_SIZE = 0x1A0000

LOG2E = 0x3fb8aa3b
SCALE = 0x3db504f3
EPS   = 0x3727c5ac

KARG = dict(x=0, k=8, v=16, wq=24, wo=32, bx=40, wg=48, wu=56, wd=64, out=72, dbg=80, ws=88)

NSLOT = 3
NT = " nt"
INTERLEAVE = True

def srd(a, d, ptr, nbytes, off=0):
    if off:
        a(f"s_add_u32 s{d}, s{ptr}, {off}")
        a(f"s_addc_u32 s{d+1}, s{ptr+1}, 0")
        a(f"s_and_b32 s{d+1}, s{d+1}, 0xffff")
    else:
        a(f"s_mov_b32 s{d}, s{ptr}")
        a(f"s_and_b32 s{d+1}, s{ptr+1}, 0xffff")
    a(f"s_mov_b32 s{d+2}, {nbytes}")
    a(f"s_mov_b32 s{d+3}, 0x00020000")

def wave_allreduce(a, v, t, op):
    for ctl in ("quad_perm:[1,0,3,2]", "quad_perm:[2,3,0,1]", "row_half_mirror", "row_mirror"):
        a(f"v_{op}_f32_dpp v{v}, v{v}, v{v} {ctl} row_mask:0xf bank_mask:0xf")
    a(f"v_mov_b32 v{t}, v{v}")
    a(f"v_permlane16_swap_b32 v{v}, v{t}")
    a(f"v_{op}_f32 v{v}, v{v}, v{t}")
    a(f"v_mov_b32 v{t}, v{v}")
    a(f"v_permlane32_swap_b32 v{v}, v{t}")
    a(f"v_{op}_f32 v{v}, v{v}, v{t}")

def rbf(a, v, t=None):
    a(f"v_cvt_pk_bf16_f32 v{v}, v{v}, v{v}")
    a(f"v_lshlrev_b32 v{v}, 16, v{v}")

def layernorm(a, src, f, t):
    for i in range(4):
        a(f"v_lshlrev_b32 v{f+2*i}, 16, v{src+i}")
        a(f"v_and_b32 v{f+2*i+1}, 0xffff0000, v{src+i}")
    a(f"v_add_f32 v{t}, v{f}, v{f+1}")
    for i in range(2, 8):
        a(f"v_add_f32 v{t}, v{t}, v{f+i}")
    wave_allreduce(a, t, t+1, "add")
    a(f"v_mul_f32 v{t}, 0x3b000000, v{t}")
    a(f"v_sub_f32 v{t+1}, v{f}, v{t}")
    a(f"v_mul_f32 v{t+2}, v{t+1}, v{t+1}")
    for i in range(1, 8):
        a(f"v_sub_f32 v{t+1}, v{f+i}, v{t}")
        a(f"v_fmac_f32 v{t+2}, v{t+1}, v{t+1}")
    wave_allreduce(a, t+2, t+1, "add")
    a(f"v_mul_f32 v{t+2}, 0x3b000000, v{t+2}")
    rbf(a, t)
    rbf(a, t+2)
    a(f"v_add_f32 v{t+2}, {EPS:#x}, v{t+2}")
    rbf(a, t+2)
    a(f"v_sqrt_f32 v{t+2}, v{t+2}")
    rbf(a, t+2)
    a(f"v_rcp_f32 v{t+3}, v{t+2}")
    for i in range(8):
        a(f"v_sub_f32 v{f+i}, v{f+i}, v{t}")
        rbf(a, f+i)
        a(f"v_mul_f32 v{t+4}, v{f+i}, v{t+3}")
        a(f"v_fma_f32 v{t+5}, -v{t+4}, v{t+2}, v{f+i}")
        a(f"v_fma_f32 v{f+i}, v{t+5}, v{t+3}, v{t+4}")
    for i in range(4):
        a(f"v_cvt_pk_bf16_f32 v{src+i}, v{f+2*i}, v{f+2*i+1}")

def kdesc(name, vgpr, sgpr=96):
    acc = (vgpr + 3) // 4 * 4
    return f""".section .rodata,"a"
.p2align 6
.amdhsa_kernel {name}
  .amdhsa_next_free_vgpr {vgpr}
  .amdhsa_next_free_sgpr {sgpr}
  .amdhsa_accum_offset {acc}
  .amdhsa_group_segment_fixed_size 0
  .amdhsa_kernarg_size 96
  .amdhsa_user_sgpr_count 2
  .amdhsa_user_sgpr_kernarg_segment_ptr 1
  .amdhsa_system_sgpr_workgroup_id_x 1
.end_amdhsa_kernel
"""

def khead(a, name):
    a.raw(".text")
    a.raw(f".globl {name}")
    a.raw(".p2align 8")
    a.raw(f".type {name},@function")
    a.raw(f"{name}:")

def lane_setup(a, sw=3):
    a(f"v_and_b32 v1, 63, v0")
    a(f"v_lshrrev_b32 v2, 6, v0")
    a(f"v_readfirstlane_b32 s{sw}, v2")
    a(f"v_and_b32 v2, 15, v1")
    a(f"v_lshrrev_b32 v3, 4, v1")

def gemv_wave(a, vD, vWaddr, vAaddr, vt, woff=0):
    for ks in range(2):
        a(f"ds_read_b64_tr_b16 v[{vt+8*ks}:{vt+8*ks+1}], v{vWaddr} offset:{woff + ks*1024}")
        a(f"ds_read_b64_tr_b16 v[{vt+8*ks+2}:{vt+8*ks+3}], v{vWaddr} offset:{woff + ks*1024 + 128}")
        a(f"ds_read_b128 v[{vt+8*ks+4}:{vt+8*ks+7}], v{vAaddr} offset:{ks*64}")
    a("s_waitcnt lgkmcnt(0)")
    a(f"v_mfma_f32_16x16x32_bf16 v[{vD}:{vD+3}], v[{vt}:{vt+3}], v[{vt+4}:{vt+7}], 0")
    a(f"v_mfma_f32_16x16x32_bf16 v[{vD}:{vD+3}], v[{vt+8}:{vt+11}], v[{vt+12}:{vt+15}], v[{vD}:{vD+3}]")

def gemv_addr(a, vW, vA, wbase, abase, sw):
    a(f"v_lshrrev_b32 v4, 2, v2")
    a(f"v_lshl_add_u32 v4, v3, 3, v4")
    a(f"v_lshlrev_b32 v4, 5, v4")
    a(f"v_and_b32 v5, 3, v2")
    a(f"v_lshl_add_u32 v4, v5, 3, v4")
    a(f"s_lshl_b32 s90, s{sw}, 11")
    a(f"s_add_u32 s90, s90, {wbase}")
    a(f"v_add_u32 v{vW}, s90, v4")
    a(f"v_lshlrev_b32 v4, 10, v5")
    a(f"v_lshl_add_u32 v4, v3, 4, v4")
    a(f"s_lshl_b32 s90, s{sw}, 7")
    a(f"s_add_u32 s90, s90, {abase}")
    a(f"v_add_u32 v{vA}, s90, v4")

def wslice_load(a, vdst, srdW, rowbytes, scol, sw, srow0=None):
    a(f"v_lshrrev_b32 v4, 1, v1")
    a(f"s_lshl_b32 s90, s{sw}, 6")
    if srow0 is not None:
        a(f"s_add_u32 s90, s90, s{srow0}")
    a(f"v_add_u32 v4, s90, v4")
    a(f"s_mov_b32 s91, {rowbytes}")
    a(f"v_mul_lo_u32 v4, v4, s91")
    a(f"v_and_b32 v5, 1, v1")
    a(f"v_lshl_add_u32 v4, v5, 4, v4")
    a(f"v_add_u32 v4, s{scol}, v4")
    a(f"v_add_u32 v5, {32*rowbytes}, v4")
    a(f"buffer_load_dwordx4 v[{vdst}:{vdst+3}], v4, s[{srdW}:{srdW+3}], 0 offen")
    a(f"buffer_load_dwordx4 v[{vdst+4}:{vdst+7}], v5, s[{srdW}:{srdW+3}], 0 offen")

def wslice_store(a, vsrc, wbase, sw):
    a(f"s_lshl_b32 s90, s{sw}, 11")
    a(f"s_add_u32 s90, s90, {wbase}")
    a(f"v_lshlrev_b32 v4, 4, v1")
    a(f"v_add_u32 v4, s90, v4")
    a(f"ds_write_b128 v4, v[{vsrc}:{vsrc+3}]")
    a(f"ds_write_b128 v4, v[{vsrc+4}:{vsrc+7}] offset:1024")

def k_qproj(a):
    name = "qproj_kernel"
    khead(a, name)
    L_XN, L_W, L_RED = 0, 4096, 4096 + 16384
    a("s_cmp_ge_u32 s2, 256")
    a("s_cbranch_scc1 L_q_end")
    a(f"s_load_dwordx2 s[4:5], s[0:1], {KARG['x']}")
    a(f"s_load_dwordx2 s[6:7], s[0:1], {KARG['wq']}")
    a(f"s_load_dwordx2 s[8:9], s[0:1], {KARG['ws']}")
    lane_setup(a)
    a("s_and_b32 s10, s2, 7")
    a("s_lshr_b32 s11, s2, 3")
    a("s_lshl_b32 s12, s10, 10")
    a("s_lshl_b32 s13, s11, 5")
    a("s_add_u32 s12, s12, s13")
    a("s_waitcnt lgkmcnt(0)")
    srd(a, 16, 4, 4096)
    srd(a, 20, 6, 512*8192)
    srd(a, 24, 8, 32768, WS_Q)
    wslice_load(a, 8, 20, 8192, 12, 3)
    a("s_and_b32 s14, s3, 3")
    a("s_lshl_b32 s14, s14, 10")
    a("v_lshlrev_b32 v6, 4, v1")
    a("buffer_load_dwordx4 v[16:19], v6, s[16:19], s14 offen")
    a("s_waitcnt vmcnt(0)")
    wslice_store(a, 8, L_W, 3)
    layernorm(a, 16, 20, 28)
    a("s_cmp_ge_u32 s3, 4")
    a("s_cbranch_scc1 L_q_skip")
    a(f"v_add_u32 v6, s14, v6")
    a(f"ds_write_b128 v6, v[16:19] offset:{L_XN}")
    a("L_q_skip:")
    gemv_addr(a, 6, 7, L_W, L_XN, 3)
    a("s_waitcnt lgkmcnt(0)")
    a("s_barrier")
    gemv_wave(a, 36, 6, 7, 40)
    a("s_lshl_b32 s90, s3, 8")
    a(f"s_add_u32 s90, s90, {L_RED}")
    a("v_lshlrev_b32 v4, 6, v2")
    a("v_lshl_add_u32 v4, v3, 4, v4")
    a("v_add_u32 v4, s90, v4")
    a("v_cmp_gt_u32 vcc, 4, v2")
    a("s_and_saveexec_b64 s[30:31], vcc")
    a("ds_write_b128 v4, v[36:39]")
    a("s_mov_b64 exec, s[30:31]")
    a("s_waitcnt lgkmcnt(0)")
    a("s_barrier")
    a("s_cmp_ge_u32 s3, 1")
    a("s_cbranch_scc1 L_q_end")
    a("v_lshlrev_b32 v4, 2, v1")
    for w in range(8):
        a(f"ds_read_b32 v{8+w}, v4 offset:{L_RED + w*256}")
    a("s_waitcnt lgkmcnt(0)")
    for w in range(1, 8):
        a(f"v_add_f32 v8, v8, v{8+w}")
    a("v_cvt_pk_bf16_f32 v8, v8, v8")
    a("v_lshlrev_b32 v4, 13, v3")
    a("v_lshl_add_u32 v4, v2, 1, v4")
    a("buffer_store_short v8, v4, s[24:27], s12 offen")
    a("L_q_end:")
    a("s_endpgm")
    return kdesc(name, 64), 4096 + 16384 + 2048

def k_attn(a):
    name = "attn_kernel"
    khead(a, name)
    vQ = 8
    vS = 24
    vB = 88
    vT = vB + 32*NSLOT
    vM = vT + 16
    NV = vM + 8
    vKo, vVo = 4, 5
    L_O, L_ML = 0, 16384
    a("s_cmp_ge_u32 s2, 256")
    a("s_cbranch_scc1 L_a_end")
    a(f"s_load_dwordx2 s[4:5], s[0:1], {KARG['k']}")
    a(f"s_load_dwordx2 s[6:7], s[0:1], {KARG['v']}")
    a(f"s_load_dwordx2 s[8:9], s[0:1], {KARG['ws']}")
    lane_setup(a)
    a("s_and_b32 s10, s2, 7")
    a("s_lshr_b32 s11, s2, 3")
    a("s_and_b32 s12, s11, 3")
    a("s_lshr_b32 s13, s11, 2")
    a("s_lshl_b32 s14, s12, 3")
    a("s_add_u32 s14, s14, s10")
    a("s_lshl_b32 s15, s14, 22")
    a("v_lshrrev_b32 v6, 2, v2")
    a("v_lshlrev_b32 v6, 3, v6")
    a("v_and_b32 v7, 3, v2")
    a("v_add_u32 v6, v6, v7")
    a("v_lshlrev_b32 v6, 8, v6")
    a(f"v_lshl_add_u32 v{vKo}, v3, 4, v6")
    a("v_lshlrev_b32 v6, 11, v3")
    a(f"v_lshl_add_u32 v{vVo}, v2, 4, v6")
    a("s_lshl_b32 s28, s13, 19")
    if INTERLEAVE:
        a("s_lshl_b32 s29, s3, 13"); stepstride = 65536
    else:
        a("s_lshl_b32 s29, s3, 16"); stepstride = 8192
    a("s_add_u32 s28, s28, s29")
    a("s_waitcnt lgkmcnt(0)")
    a("s_add_u32 s16, s4, s15"); a("s_addc_u32 s17, s5, 0"); a("s_and_b32 s17, s17, 0xffff")
    a("s_mov_b32 s18, 0x400000"); a("s_mov_b32 s19, 0x00020000")
    a("s_add_u32 s20, s6, s15"); a("s_addc_u32 s21, s7, 0"); a("s_and_b32 s21, s21, 0xffff")
    a("s_mov_b32 s22, 0x400000"); a("s_mov_b32 s23, 0x00020000")
    srd(a, 24, 8, WS_SIZE)
    a("v_lshlrev_b32 v6, 8, v7")
    a("v_lshl_add_u32 v6, v3, 4, v6")
    a("s_lshl_b32 s30, s12, 13")
    a("s_lshl_b32 s31, s10, 10")
    a("s_add_u32 s30, s30, s31")
    for t in range(4):
        a(f"buffer_load_dwordx4 v[{vQ+4*t}:{vQ+4*t+3}], v6, s[24:27], s30 offen offset:{WS_Q + 64*t}")
    a("s_mov_b32 s32, 0x05040100")
    a("s_mov_b32 s33, 0x07060302")
    a(f"s_mov_b32 s34, {SCALE:#x}")
    a(f"s_mov_b32 s35, {LOG2E:#x}")

    def issue(n):
        slot = vB + 32*(n % NSLOT)
        st = n % 8
        a(f"s_add_u32 s29, s28, {st*stepstride}")
        if n < 8:
            for tb in range(2):
                for t in range(4):
                    r = slot + 16*tb + 4*t
                    a(f"buffer_load_dwordx4 v[{r}:{r+3}], v{vKo}, s[16:19], s29 offen offset:{1024*tb + 64*t}{NT}")
        else:
            for e in range(8):
                r = slot + 4*e
                a(f"buffer_load_dwordx4 v[{r}:{r+3}], v{vVo}, s[20:23], s29 offen offset:{256*e}{NT}")

    for n in range(NSLOT):
        issue(n)
    for n in range(16):
        inflight_after = min(16, n + NSLOT) - (n + 1)
        a(f"s_waitcnt vmcnt({8*inflight_after})")
        slot = vB + 32*(n % NSLOT)
        if n < 8:
            for tb in range(2):
                d = vS + 8*n + 4*tb
                for t in range(4):
                    r = slot + 16*tb + 4*t
                    c = "0" if t == 0 else f"v[{d}:{d+3}]"
                    a(f"v_mfma_f32_16x16x32_bf16 v[{d}:{d+3}], v[{r}:{r+3}], v[{vQ+4*t}:{vQ+4*t+3}], {c}")
            if n + NSLOT < 16: issue(n + NSLOT)
            if n == 7:
                for p in range(32):
                    s0, s1 = vS + 2*p, vS + 2*p + 1
                    a(f"v_cvt_pk_bf16_f32 v{vT}, v{s0}, v{s1}")
                    a(f"v_lshlrev_b32 v{s0}, 16, v{vT}")
                    a(f"v_and_b32 v{s1}, 0xffff0000, v{vT}")
                    a(f"v_mul_f32 v{s0}, s34, v{s0}")
                    a(f"v_mul_f32 v{s1}, s34, v{s1}")
                    a(f"v_cvt_pk_bf16_f32 v{vT}, v{s0}, v{s1}")
                    a(f"v_lshlrev_b32 v{s0}, 16, v{vT}")
                    a(f"v_and_b32 v{s1}, 0xffff0000, v{vT}")
                    if p == 0:
                        a(f"v_max_f32 v{vM}, v{s0}, v{s1}")
                    else:
                        a(f"v_max3_f32 v{vM}, v{s0}, v{s1}, v{vM}")
                a(f"v_mov_b32 v{vM+1}, v{vM}")
                a(f"v_permlane16_swap_b32 v{vM}, v{vM+1}")
                a(f"v_max_f32 v{vM}, v{vM}, v{vM+1}")
                a(f"v_mov_b32 v{vM+1}, v{vM}")
                a(f"v_permlane32_swap_b32 v{vM}, v{vM+1}")
                a(f"v_max_f32 v{vM}, v{vM}, v{vM+1}")
                a(f"v_mul_f32 v{vM+1}, s35, v{vM}")
                a(f"v_mov_b32 v{vM+2}, 0")
                for i in range(64):
                    s0 = vS + i
                    a(f"v_fma_f32 v{s0}, v{s0}, s35, -v{vM+1}")
                    a(f"v_exp_f32 v{s0}, v{s0}")
                    a(f"v_add_f32 v{vM+2}, v{vM+2}, v{s0}")
                for st in range(8):
                    for p in range(4):
                        a(f"v_cvt_pk_bf16_f32 v{vS+8*st+p}, v{vS+8*st+2*p}, v{vS+8*st+2*p+1}")
        else:
            st = n - 8
            pb = vS + 8*st
            for c in range(4):
                for hl in range(2):
                    e = 2*c + hl
                    tt = vT + 4*(e % 4)
                    for p in range(4):
                        a(f"v_perm_b32 v{tt+p}, v{slot+4*(2*p+1)+c}, v{slot+4*(2*p)+c}, s{32+hl}")
                    acc = vS + 8*e + 4
                    cc = "0" if st == 0 else f"v[{acc}:{acc+3}]"
                    a(f"v_mfma_f32_16x16x32_bf16 v[{acc}:{acc+3}], v[{tt}:{tt+3}], v[{pb}:{pb+3}], {cc}")
            if n + NSLOT < 16: issue(n + NSLOT)
    a(f"v_mov_b32 v{vM+1}, v{vM+2}")
    a(f"v_permlane16_swap_b32 v{vM+2}, v{vM+1}")
    a(f"v_add_f32 v{vM+2}, v{vM+2}, v{vM+1}")
    a(f"v_mov_b32 v{vM+1}, v{vM+2}")
    a(f"v_permlane32_swap_b32 v{vM+2}, v{vM+1}")
    a(f"v_add_f32 v{vM+1}, v{vM+2}, v{vM+1}")
    a("s_lshl_b32 s90, s3, 11")
    a("v_lshlrev_b32 v6, 9, v2")
    a("v_lshl_add_u32 v6, v3, 4, v6")
    a("v_add_u32 v6, s90, v6")
    a("s_lshl_b32 s91, s3, 3")
    a("v_lshlrev_b32 v7, 6, v2")
    a("v_add_u32 v7, s91, v7")
    a("v_cmp_gt_u32 vcc, 4, v2")
    a("s_and_saveexec_b64 s[36:37], vcc")
    for e in range(8):
        acc = vS + 8*e + 4
        a(f"ds_write_b128 v6, v[{acc}:{acc+3}] offset:{L_O + e*64}")
    a(f"ds_write_b64 v7, v[{vM}:{vM+1}] offset:{L_ML}")
    a("s_mov_b64 exec, s[36:37]")
    a("s_waitcnt lgkmcnt(0)")
    a("s_barrier")
    a("v_lshrrev_b32 v6, 7, v0")
    a("v_and_b32 v7, 127, v0")
    a("v_lshlrev_b32 v8, 6, v6")
    for i in range(4):
        a(f"ds_read_b128 v[{24+4*i}:{24+4*i+3}], v8 offset:{L_ML + 16*i}")
    a("v_and_b32 v9, 7, v7")
    a("v_lshlrev_b32 v9, 6, v9")
    a("v_lshrrev_b32 v10, 5, v7")
    a("v_lshl_add_u32 v9, v10, 4, v9")
    a("v_bfe_u32 v10, v7, 3, 2")
    a("v_lshl_add_u32 v9, v10, 2, v9")
    a("v_lshl_add_u32 v9, v6, 9, v9")
    for w in range(8):
        a(f"ds_read_b32 v{40+w}, v9 offset:{L_O + w*2048}")
    a("s_waitcnt lgkmcnt(0)")
    a("v_max_f32 v10, v24, v26")
    for w in range(2, 8):
        a(f"v_max_f32 v10, v10, v{24+2*w}")
    a("v_mov_b32 v11, 0")
    a("v_mov_b32 v12, 0")
    for w in range(8):
        a(f"v_sub_f32 v13, v{24+2*w}, v10")
        a(f"v_mul_f32 v13, s35, v13")
        a(f"v_exp_f32 v13, v13")
        a(f"v_fmac_f32 v11, v13, v{25+2*w}")
        a(f"v_fmac_f32 v12, v13, v{40+w}")
    a("s_lshl_b32 s38, s10, 2"); a("s_add_u32 s38, s38, s12"); a("s_lshl_b32 s38, s38, 3"); a("s_add_u32 s38, s38, s13")
    a("s_lshl_b32 s39, s38, 11")
    a(f"s_add_u32 s39, s39, {WS_PO}")
    a("v_lshlrev_b32 v13, 2, v0")
    a("buffer_store_dword v12, v13, s[24:27], s39 offen")
    a("s_lshl_b32 s39, s38, 5")
    a(f"s_add_u32 s39, s39, {WS_ML}")
    a("v_lshlrev_b32 v13, 3, v6")
    a("v_cmp_eq_u32 vcc, 0, v7")
    a("s_and_saveexec_b64 s[36:37], vcc")
    a("buffer_store_dwordx2 v[10:11], v13, s[24:27], s39 offen")
    a("L_a_end:")
    a("s_endpgm")
    return kdesc(name, NV), 16384 + 256

def k_oproj(a):
    name = "oproj_kernel"
    khead(a, name)
    L_XN, L_W, L_RED = 0, 4096, 4096 + 16384
    a("s_cmp_ge_u32 s2, 256")
    a("s_cbranch_scc1 L_o_end")
    a(f"s_load_dwordx2 s[6:7], s[0:1], {KARG['wo']}")
    a(f"s_load_dwordx2 s[8:9], s[0:1], {KARG['ws']}")
    lane_setup(a)
    a("s_and_b32 s10, s2, 7")
    a("s_lshr_b32 s11, s2, 3")
    a("s_lshl_b32 s12, s11, 5")
    a("s_lshl_b32 s13, s10, 9")
    a(f"s_mov_b32 s35, {LOG2E:#x}")
    a("s_waitcnt lgkmcnt(0)")
    srd(a, 20, 6, 4096*1024)
    srd(a, 24, 8, WS_SIZE)
    wslice_load(a, 8, 20, 1024, 12, 3, srow0=13)
    a("v_lshrrev_b32 v6, 7, v0")
    a("v_and_b32 v7, 127, v0")
    a("v_lshlrev_b32 v16, 14, v6")
    a("v_lshl_add_u32 v16, v7, 4, v16")
    a("s_lshl_b32 s14, s10, 16")
    a(f"s_add_u32 s14, s14, {WS_PO}")
    a("v_lshlrev_b32 v17, 8, v6")
    a("v_lshrrev_b32 v18, 5, v7")
    a("v_lshl_add_u32 v17, v18, 3, v17")
    a("s_lshl_b32 s15, s10, 10")
    a(f"s_add_u32 s15, s15, {WS_ML}")
    for s in range(8):
        a(f"buffer_load_dwordx2 v[{20+2*s}:{21+2*s}], v17, s[24:27], s15 offen offset:{32*s}")
    for s in range(8):
        if s % 2 == 0 and s > 0:
            a(f"s_add_u32 s14, s14, 4096")
        a(f"buffer_load_dwordx4 v[{36+4*s}:{39+4*s}], v16, s[24:27], s14 offen offset:{2048*(s%2)}")
    a("s_waitcnt vmcnt(16)")
    wslice_store(a, 8, L_W, 3)
    a("s_waitcnt vmcnt(8)")
    a("v_max_f32 v10, v20, v22")
    for s in range(2, 8):
        a(f"v_max_f32 v10, v10, v{20+2*s}")
    a("v_mov_b32 v11, 0")
    for s in range(8):
        a(f"v_sub_f32 v{20+2*s}, v{20+2*s}, v10")
        a(f"v_mul_f32 v{20+2*s}, s35, v{20+2*s}")
        a(f"v_exp_f32 v{20+2*s}, v{20+2*s}")
        a(f"v_fmac_f32 v11, v{20+2*s}, v{21+2*s}")
    a("s_waitcnt vmcnt(0)")
    for c in range(4):
        a(f"v_mul_f32 v{12+c}, v20, v{36+c}")
    for s in range(1, 8):
        for c in range(4):
            a(f"v_fmac_f32 v{12+c}, v{20+2*s}, v{36+4*s+c}")
    a("v_rcp_f32 v10, v11")
    for c in range(4):
        a(f"v_mul_f32 v18, v{12+c}, v10")
        a(f"v_fma_f32 v19, -v18, v11, v{12+c}")
        a(f"v_fma_f32 v{12+c}, v19, v10, v18")
    a("v_cvt_pk_bf16_f32 v12, v12, v13")
    a("v_cvt_pk_bf16_f32 v13, v14, v15")
    a("v_lshlrev_b32 v10, 3, v0")
    a(f"ds_write_b64 v10, v[12:13] offset:{L_XN}")
    gemv_addr(a, 6, 7, L_W, L_XN, 3)
    a("s_waitcnt lgkmcnt(0)")
    a("s_barrier")
    gemv_wave(a, 36, 6, 7, 40)
    a("s_lshl_b32 s90, s3, 8")
    a(f"s_add_u32 s90, s90, {L_RED}")
    a("v_lshlrev_b32 v4, 6, v2")
    a("v_lshl_add_u32 v4, v3, 4, v4")
    a("v_add_u32 v4, s90, v4")
    a("v_cmp_gt_u32 vcc, 4, v2")
    a("s_and_saveexec_b64 s[30:31], vcc")
    a("ds_write_b128 v4, v[36:39]")
    a("s_mov_b64 exec, s[30:31]")
    a("s_waitcnt lgkmcnt(0)")
    a("s_barrier")
    a("s_cmp_ge_u32 s3, 1")
    a("s_cbranch_scc1 L_o_end")
    a("v_lshlrev_b32 v4, 2, v1")
    for w in range(8):
        a(f"ds_read_b32 v{8+w}, v4 offset:{L_RED + w*256}")
    a("s_waitcnt lgkmcnt(0)")
    for w in range(1, 8):
        a(f"v_add_f32 v8, v8, v{8+w}")
    a("v_lshlrev_b32 v4, 11, v3")
    a("v_lshl_add_u32 v4, v2, 2, v4")
    a("s_lshl_b32 s14, s10, 13")
    a("s_lshl_b32 s15, s11, 6")
    a("s_add_u32 s14, s14, s15")
    a(f"s_add_u32 s14, s14, {WS_AO}")
    a("buffer_store_dword v8, v4, s[24:27], s14 offen")
    a("L_o_end:")
    a("s_endpgm")
    return kdesc(name, 72), 4096 + 16384 + 2048

def k_ffn(a):
    name = "ffn_kernel"
    khead(a, name)
    L_XN, L_HB, L_WG, L_WU, L_WD, L_RED, L_ACT = 0, 4096, 8192, 8192+16384, 8192+32768, 8192+49152, 8192+49152+4096
    a("s_cmp_ge_u32 s2, 112")
    a("s_cbranch_scc1 L_f_end")
    a(f"s_load_dwordx2 s[4:5], s[0:1], {KARG['x']}")
    a(f"s_load_dwordx4 s[40:43], s[0:1], {KARG['wg']}")
    a(f"s_load_dwordx2 s[44:45], s[0:1], {KARG['wd']}")
    a(f"s_load_dwordx2 s[8:9], s[0:1], {KARG['ws']}")
    lane_setup(a)
    a("s_lshl_b32 s12, s2, 5")
    a("s_waitcnt lgkmcnt(0)")
    srd(a, 16, 4, 4096)
    srd(a, 20, 40, 512*3584)
    srd(a, 28, 42, 512*3584)
    srd(a, 32, 44, 1792*1024)
    srd(a, 24, 8, WS_SIZE)
    a("v_lshlrev_b32 v16, 4, v0")
    a(f"s_mov_b32 s14, {WS_AO}")
    for k in range(8):
        a(f"buffer_load_dwordx4 v[{36+4*k}:{39+4*k}], v16, s[24:27], s14 offen")
        if k < 7: a("s_add_u32 s14, s14, 8192")
    a("v_lshlrev_b32 v17, 3, v0")
    a("buffer_load_dwordx2 v[18:19], v17, s[16:19], 0 offen")
    wslice_load(a, 8, 20, 3584, 12, 3)
    wslice_load(a, 68, 28, 3584, 12, 3)
    a("s_lshl_b32 s13, s2, 14")
    a("buffer_load_dwordx4 v[76:79], v16, s[32:35], s13 offen")
    a("s_add_u32 s13, s13, 8192")
    a("buffer_load_dwordx4 v[80:83], v16, s[32:35], s13 offen")
    a("s_waitcnt vmcnt(6)")
    for k in range(1, 8):
        for c in range(4):
            a(f"v_add_f32 v{36+c}, v{36+c}, v{36+4*k+c}")
    for c in range(4): rbf(a, 36+c)
    a("v_lshlrev_b32 v40, 16, v18"); a("v_and_b32 v41, 0xffff0000, v18")
    a("v_lshlrev_b32 v42, 16, v19"); a("v_and_b32 v43, 0xffff0000, v19")
    for c in range(4): a(f"v_add_f32 v{36+c}, v{36+c}, v{40+c}")
    a("v_cvt_pk_bf16_f32 v36, v36, v37")
    a("v_cvt_pk_bf16_f32 v37, v38, v39")
    a(f"ds_write_b64 v17, v[36:37] offset:{L_HB}")
    a("s_cmp_lg_u32 s2, 0")
    a("s_cbranch_scc1 L_f_noh")
    a(f"s_mov_b32 s14, {WS_H}")
    a("buffer_store_dwordx2 v[36:37], v17, s[24:27], s14 offen")
    a("L_f_noh:")
    a("s_waitcnt vmcnt(0)")
    wslice_store(a, 8, L_WG, 3)
    wslice_store(a, 68, L_WU, 3)
    a(f"ds_write_b128 v16, v[76:79] offset:{L_WD}")
    a(f"ds_write_b128 v16, v[80:83] offset:{L_WD+8192}")
    a("s_waitcnt lgkmcnt(0)")
    a("s_barrier")
    a("s_cmp_ge_u32 s3, 4")
    a("s_cbranch_scc1 L_f_skip")
    a("v_lshlrev_b32 v6, 4, v0")
    a(f"ds_read_b128 v[16:19], v6 offset:{L_HB}")
    a("s_waitcnt lgkmcnt(0)")
    layernorm(a, 16, 20, 28)
    a(f"ds_write_b128 v6, v[16:19] offset:{L_XN}")
    a("L_f_skip:")
    gemv_addr(a, 6, 7, L_WG, L_XN, 3)
    a("s_waitcnt lgkmcnt(0)")
    a("s_barrier")
    gemv_wave(a, 36, 6, 7, 40)
    gemv_wave(a, 56, 6, 7, 60, woff=16384)
    a("s_lshl_b32 s90, s3, 8")
    a(f"s_add_u32 s90, s90, {L_RED}")
    a("v_lshlrev_b32 v4, 6, v2")
    a("v_lshl_add_u32 v4, v3, 4, v4")
    a("v_add_u32 v4, s90, v4")
    a("v_cmp_gt_u32 vcc, 4, v2")
    a("s_and_saveexec_b64 s[46:47], vcc")
    a("ds_write_b128 v4, v[36:39]")
    a("ds_write_b128 v4, v[56:59] offset:2048")
    a("s_mov_b64 exec, s[46:47]")
    a("s_waitcnt lgkmcnt(0)")
    a("s_barrier")
    a("s_cmp_ge_u32 s3, 1")
    a("s_cbranch_scc1 L_f_skip2")
    a("v_lshlrev_b32 v4, 2, v1")
    for w in range(8):
        a(f"ds_read_b32 v{8+w}, v4 offset:{L_RED + w*256}")
        a(f"ds_read_b32 v{16+w}, v4 offset:{L_RED + 2048 + w*256}")
    a("s_waitcnt lgkmcnt(0)")
    for w in range(1, 8):
        a(f"v_add_f32 v8, v8, v{8+w}")
        a(f"v_add_f32 v16, v16, v{16+w}")
    rbf(a, 8); rbf(a, 16)
    a("v_mul_f32 v9, v8, v8")
    a("v_mul_f32 v9, 0x3d372713, v9")
    a("v_fma_f32 v9, v9, v8, v8")
    a("v_mul_f32 v9, 0xc0135761, v9")
    a("v_exp_f32 v9, v9")
    a("v_add_f32 v9, 1.0, v9")
    a("v_rcp_f32 v10, v9")
    a("v_mul_f32 v11, v8, v10")
    a("v_fma_f32 v12, -v11, v9, v8")
    a("v_fma_f32 v12, v12, v10, v11")
    a("v_cmp_gt_f32 vcc, 0x7f000000, v9")
    a("v_cndmask_b32 v11, v11, v12, vcc")
    rbf(a, 11)
    a("v_mul_f32 v11, v11, v16")
    a("v_cvt_pk_bf16_f32 v11, v11, v11")
    a("v_lshlrev_b32 v4, 1, v1")
    a(f"ds_write_b16 v4, v11 offset:{L_ACT}")
    a("L_f_skip2:")
    a("s_waitcnt lgkmcnt(0)")
    a("s_barrier")
    a("v_and_b32 v5, 3, v2")
    a("v_lshlrev_b32 v4, 5, v5")
    a("v_lshl_add_u32 v4, v3, 3, v4")
    a(f"ds_read_b64 v[8:9], v4 offset:{L_ACT}")
    a("v_lshrrev_b32 v6, 2, v2")
    a("v_lshl_add_u32 v6, v3, 2, v6")
    a("v_lshlrev_b32 v6, 10, v6")
    a("v_lshl_add_u32 v6, v5, 3, v6")
    a("s_lshl_b32 s90, s3, 7")
    a("v_add_u32 v6, s90, v6")
    for m in range(4):
        a(f"ds_read_b64_tr_b16 v[{10+2*m}:{11+2*m}], v6 offset:{L_WD + 32*m}")
    a("s_waitcnt lgkmcnt(0)")
    for m in range(4):
        a(f"v_mfma_f32_16x16x16_bf16 v[{20+4*m}:{23+4*m}], v[{10+2*m}:{11+2*m}], v[8:9], 0")
    a("v_lshlrev_b32 v4, 11, v2")
    a("v_lshl_add_u32 v4, v3, 4, v4")
    a("s_lshl_b32 s14, s2, 13")
    a("s_lshl_b32 s15, s3, 8")
    a("s_add_u32 s14, s14, s15")
    a(f"s_add_u32 s14, s14, {WS_DP}")
    a("v_cmp_gt_u32 vcc, 4, v2")
    a("s_and_saveexec_b64 s[46:47], vcc")
    for m in range(4):
        a(f"buffer_store_dwordx4 v[{20+4*m}:{23+4*m}], v4, s[24:27], s14 offen offset:{64*m}")
    a("L_f_end:")
    a("s_endpgm")
    return kdesc(name, 88), L_ACT + 256

def k_fin(a):
    name = "fin_kernel"
    khead(a, name)
    a("s_cmp_ge_u32 s2, 32")
    a("s_cbranch_scc1 L_z_end")
    a(f"s_load_dwordx2 s[6:7], s[0:1], {KARG['out']}")
    a(f"s_load_dwordx2 s[8:9], s[0:1], {KARG['ws']}")
    lane_setup(a)
    a("s_waitcnt lgkmcnt(0)")
    srd(a, 20, 6, 4096)
    srd(a, 24, 8, 112*8192, WS_DP)
    srd(a, 28, 8, 4096, WS_H)
    a("v_and_b32 v4, 15, v0")
    a("v_lshrrev_b32 v5, 4, v0")
    a("v_lshlrev_b32 v6, 13, v5")
    a("v_lshl_add_u32 v6, v4, 4, v6")
    a("s_lshl_b32 s12, s2, 8")
    for k in range(4):
        a(f"buffer_load_dwordx4 v[{8+4*k}:{11+4*k}], v6, s[24:27], s12 offen")
        if k < 3: a(f"s_add_u32 s12, s12, {32*8192}")
    a("s_lshl_b32 s13, s2, 7")
    a("v_lshlrev_b32 v7, 1, v1")
    a("buffer_load_ushort v24, v7, s[28:31], s13 offen")
    a("s_waitcnt vmcnt(1)")
    for k in range(1, 4):
        for c in range(4):
            a(f"v_add_f32 v{8+c}, v{8+c}, v{8+4*k+c}")
    a("v_lshlrev_b32 v6, 4, v0")
    a("ds_write_b128 v6, v[8:11]")
    a("s_waitcnt lgkmcnt(0)")
    a("s_barrier")
    a("s_cmp_ge_u32 s3, 1")
    a("s_cbranch_scc1 L_z_end")
    a("v_lshlrev_b32 v6, 2, v1")
    for p in range(32):
        a(f"ds_read_b32 v{32+p}, v6 offset:{256*p}")
    a("s_waitcnt lgkmcnt(0)")
    for p in range(1, 32):
        a(f"v_add_f32 v32, v32, v{32+p}")
    rbf(a, 32)
    a("s_waitcnt vmcnt(0)")
    a("v_lshlrev_b32 v24, 16, v24")
    a("v_add_f32 v32, v32, v24")
    a("v_cvt_pk_bf16_f32 v32, v32, v32")
    a("buffer_store_short v32, v7, s[20:23], s13 offen")
    a("L_z_end:")
    a("s_endpgm")
    return kdesc(name, 64), 8192

def main():
    a = Asm()
    descs = []
    launches = []
    for fn, grid in ((k_qproj, 256), (k_attn, 256), (k_oproj, 256), (k_ffn, 112), (k_fin, 32)):
        d, lds = fn(a)
        descs.append(d)
        nm = d.split(".amdhsa_kernel ")[1].split()[0]
        launches.append(f"; @launch kernel={nm} grid=({grid},1,1) block=(512,1,1) lds={lds}")
    body = a.finalize()
    out = HEADER + "\n".join(launches) + "\n" + '.amdgcn_target "amdgcn-amd-amdhsa--gfx950"\n' + body + "".join(descs)
    path = sys.argv[1] if len(sys.argv) > 1 else "cdna_kernels/%s.s" % NAME
    open(path, "w").write(out)
    print("wrote", path, len(out))

if __name__ == "__main__":
    main()
```

```python
import sys, os
from asmlib import Asm

NAME = "sequential_preLN__gqa_block_cached__geglu_ffn__decode"
HEADER = open("cdna_kernels/%s.s.ref" % NAME).read().split("; Override launch")[0]

WS_Q    = 0
WS_MB   = 0x8000
WS_PO   = 0x10000
WS_ML   = 0x90000
WS_AO   = 0xA0000
WS_DP   = 0xC0000
WS_TS   = 0x1A0000
WS_SIZE = 0x1B0000

LOG2E = 0x3fb8aa3b
SCALE = 0x3db504f3
EPS   = 0x3727c5ac

NSLOT = int(os.environ.get("NSLOT", 4))
NT = " nt" if os.environ.get("NT", "1") == "1" else ""
STAMP = os.environ.get("STAMP", "0") == "1"
SPIN = 1 << 16

L_O, L_ML, L_XN, L_HB, L_RED, L_ACT = 0, 16384, 20480, 24576, 28672, 32768
L_QS, L_QL, L_FIN, L_QW, L_W1 = 33024, 33280, 36864, 45056, 61440
L_W2, L_W3 = L_W1 + 16384, L_W1 + 32768
L_END = L_W1 + 49152

sK, sV, sWS, sX, sW1, sW2, sW3, sOUT, sDBG, sWQ = 16, 20, 24, 28, 32, 36, 40, 44, 48, 52
sPL, sPH, sSC, sL2 = 96, 97, 98, 99

vQ = 8; vS = 24; vB = 88; vT = vB + 32*NSLOT; vM = vT + 16; NV = vM + 8
vKo, vVo = vM + 4, vM + 5
vST = NV

def srd(a, d, ptr, nbytes):
    a(f"s_mov_b32 s{d}, s{ptr}")
    a(f"s_and_b32 s{d+1}, s{ptr+1}, 0xffff")
    a(f"s_mov_b32 s{d+2}, {nbytes}")
    a(f"s_mov_b32 s{d+3}, 0x00020000")

def wave_allreduce(a, v, t, op):
    for ctl in ("quad_perm:[1,0,3,2]", "quad_perm:[2,3,0,1]", "row_half_mirror", "row_mirror"):
        a(f"v_{op}_f32_dpp v{v}, v{v}, v{v} {ctl} row_mask:0xf bank_mask:0xf")
    a(f"v_mov_b32 v{t}, v{v}")
    a(f"v_permlane16_swap_b32 v{v}, v{t}")
    a(f"v_{op}_f32 v{v}, v{v}, v{t}")
    a(f"v_mov_b32 v{t}, v{v}")
    a(f"v_permlane32_swap_b32 v{v}, v{t}")
    a(f"v_{op}_f32 v{v}, v{v}, v{t}")

def rbf(a, v):
    a(f"v_cvt_pk_bf16_f32 v{v}, v{v}, v{v}")
    a(f"v_lshlrev_b32 v{v}, 16, v{v}")

def layernorm(a, src, f, t):
    for i in range(4):
        a(f"v_lshlrev_b32 v{f+2*i}, 16, v{src+i}")
        a(f"v_and_b32 v{f+2*i+1}, 0xffff0000, v{src+i}")
    a(f"v_add_f32 v{t}, v{f}, v{f+1}")
    for i in range(2, 8):
        a(f"v_add_f32 v{t}, v{t}, v{f+i}")
    wave_allreduce(a, t, t+1, "add")
    a(f"v_mul_f32 v{t}, 0x3b000000, v{t}")
    a(f"v_sub_f32 v{t+1}, v{f}, v{t}")
    a(f"v_mul_f32 v{t+2}, v{t+1}, v{t+1}")
    for i in range(1, 8):
        a(f"v_sub_f32 v{t+1}, v{f+i}, v{t}")
        a(f"v_fmac_f32 v{t+2}, v{t+1}, v{t+1}")
    wave_allreduce(a, t+2, t+1, "add")
    a(f"v_mul_f32 v{t+2}, 0x3b000000, v{t+2}")
    rbf(a, t)
    rbf(a, t+2)
    a(f"v_add_f32 v{t+2}, {EPS:#x}, v{t+2}")
    rbf(a, t+2)
    a(f"v_sqrt_f32 v{t+2}, v{t+2}")
    rbf(a, t+2)
    a(f"v_rcp_f32 v{t+3}, v{t+2}")
    for i in range(8):
        a(f"v_sub_f32 v{f+i}, v{f+i}, v{t}")
        rbf(a, f+i)
        a(f"v_mul_f32 v{t+4}, v{f+i}, v{t+3}")
        a(f"v_fma_f32 v{t+5}, -v{t+4}, v{t+2}, v{f+i}")
        a(f"v_fma_f32 v{f+i}, v{t+5}, v{t+3}, v{t+4}")
    for i in range(4):
        a(f"v_cvt_pk_bf16_f32 v{src+i}, v{f+2*i}, v{f+2*i+1}")

def gemv_wave(a, vD, vWaddr, vAaddr, vt, woff=0, rowb=32):
    for ks in range(2):
        a(f"ds_read_b64_tr_b16 v[{vt+8*ks}:{vt+8*ks+1}], v{vWaddr} offset:{woff + ks*32*rowb}")
        a(f"ds_read_b64_tr_b16 v[{vt+8*ks+2}:{vt+8*ks+3}], v{vWaddr} offset:{woff + ks*32*rowb + 4*rowb}")
        a(f"ds_read_b128 v[{vt+8*ks+4}:{vt+8*ks+7}], v{vAaddr} offset:{ks*64}")
    a("s_waitcnt lgkmcnt(0)")
    a(f"v_mfma_f32_16x16x32_bf16 v[{vD}:{vD+3}], v[{vt}:{vt+3}], v[{vt+4}:{vt+7}], 0")
    a(f"v_mfma_f32_16x16x32_bf16 v[{vD}:{vD+3}], v[{vt+8}:{vt+11}], v[{vt+12}:{vt+15}], v[{vD}:{vD+3}]")

def gemv_addr(a, vW, vA, wbase, abase, rowsh=5):
    a(f"v_lshrrev_b32 v4, 2, v2")
    a(f"v_lshl_add_u32 v4, v3, 3, v4")
    a(f"v_lshlrev_b32 v4, {rowsh}, v4")
    a(f"v_and_b32 v5, 3, v2")
    a(f"v_lshl_add_u32 v4, v5, 3, v4")
    a(f"s_lshl_b32 s56, s3, {6+rowsh}")
    a(f"s_add_u32 s56, s56, {wbase}")
    a(f"v_add_u32 v{vW}, s56, v4")
    a(f"v_lshlrev_b32 v4, 10, v5")
    a(f"v_lshl_add_u32 v4, v3, 4, v4")
    a(f"s_lshl_b32 s56, s3, 7")
    a(f"s_add_u32 s56, s56, {abase}")
    a(f"v_add_u32 v{vA}, s56, v4")

stamp_n = [0]
def stamp(a, n=None):
    if not STAMP: return
    if n is None:
        n = stamp_n[0]; stamp_n[0] += 1
    a("s_memrealtime s[100:101]")
    a("s_waitcnt lgkmcnt(0)")
    a(f"v_writelane_b32 v{vST}, s100, {n}")

def sent_check(a, regs, vt):
    regs = list(regs)
    a(f"v_max_u32 v{vt}, v{regs[0]}, v{regs[1]}")
    rest = regs[2:]
    while len(rest) >= 2:
        a(f"v_max3_u32 v{vt}, v{rest[0]}, v{rest[1]}, v{vt}"); rest = rest[2:]
    if rest:
        a(f"v_max_u32 v{vt}, v{rest[0]}, v{vt}")
    a(f"v_cmp_eq_u32 vcc, -1, v{vt}")

def poll_tail(a, lab, sleep=1):
    a("s_cmp_eq_u64 vcc, 0")
    a(f"s_cbranch_scc1 {lab}_done")
    a(f"s_sleep {sleep}")
    a("s_add_u32 s62, s62, 1")
    a(f"s_cmp_lt_u32 s62, {SPIN}")
    a(f"s_cbranch_scc1 {lab}")
    a(f"{lab}_done:")

CSH = int(os.environ.get("CSH", 5))
PRE = int(os.environ.get("PRE", 1))
def load_counters(a):
    if CSH == 2:
        a("s_load_dwordx8 s[64:71], s[4:5], 0 glc")
    else:
        for k in range(8):
            a(f"s_load_dword s{64+k}, s[4:5], {k << CSH} glc")

def main():
    a = Asm()
    name = NAME + "_kernel"
    a.raw(".text"); a.raw(f".globl {name}"); a.raw(".p2align 8"); a.raw(f".type {name},@function"); a.raw(f"{name}:")
    a("s_cmp_ge_u32 s2, 256")
    a("s_cbranch_scc1 L_end")
    a("s_load_dwordx16 s[64:79], s[0:1], 0")
    a("s_load_dwordx8 s[80:87], s[0:1], 64")
    if STAMP:
        a(f"v_mov_b32 v{vST}, 0")
    a("v_and_b32 v1, 63, v0")
    a("v_lshrrev_b32 v2, 6, v0")
    a("v_readfirstlane_b32 s3, v2")
    a("v_and_b32 v2, 15, v1")
    a("v_lshrrev_b32 v3, 4, v1")
    a("s_and_b32 s10, s2, 7")
    a("s_lshr_b32 s11, s2, 3")
    a("s_and_b32 s12, s11, 3")
    a("s_lshr_b32 s13, s11, 2")
    a("s_lshl_b32 s7, s12, 3")
    a("s_add_u32 s7, s7, s10")
    a("s_lshl_b32 s7, s7, 22")
    a("v_lshrrev_b32 v6, 2, v2")
    a("v_lshlrev_b32 v6, 3, v6")
    a("v_and_b32 v7, 3, v2")
    a("v_add_u32 v6, v6, v7")
    a("v_lshlrev_b32 v6, 8, v6")
    a(f"v_lshl_add_u32 v{vKo}, v3, 4, v6")
    a("v_lshlrev_b32 v6, 11, v3")
    a(f"v_lshl_add_u32 v{vVo}, v2, 4, v6")
    a("s_lshl_b32 s6, s13, 19")
    a("s_lshl_b32 s56, s3, 13")
    a("s_add_u32 s6, s6, s56")
    stepstride = 65536
    a(f"s_mov_b32 s{sPL}, 0x05040100"); a(f"s_mov_b32 s{sPH}, 0x07060302")
    a(f"s_mov_b32 s{sSC}, {SCALE:#x}"); a(f"s_mov_b32 s{sL2}, {LOG2E:#x}")
    a("s_lshl_b32 s14, s10, 2"); a("s_add_u32 s14, s14, s12"); a("s_lshl_b32 s14, s14, 3"); a("s_add_u32 s14, s14, s13")
    a("s_mul_i32 s15, s10, 14"); a("s_add_u32 s15, s15, s11"); a("s_sub_u32 s15, s15, 16")
    a("s_sub_u32 s56, s11, 30"); a("s_lshl_b32 s56, s56, 3"); a("s_add_u32 s56, s56, s10")
    a("s_cmp_ge_u32 s11, 30"); a("s_cselect_b32 s15, s56, s15")
    a("v_lshrrev_b32 v4, 1, v1")
    a("v_lshlrev_b32 v4, 13, v4")
    a("v_and_b32 v5, 1, v1")
    a("v_lshl_add_u32 v4, v5, 4, v4")
    a("s_lshl_b32 s56, s3, 19"); a("s_lshl_b32 s57, s10, 10"); a("s_add_u32 s56, s56, s57")
    a("s_lshl_b32 s57, s11, 5"); a("s_add_u32 s56, s56, s57")
    a(f"s_add_u32 s57, s56, {32*8192}")
    a("s_and_b32 s63, s3, 3"); a("s_lshl_b32 s63, s63, 10")
    a("v_lshlrev_b32 v6, 4, v1")
    a("s_waitcnt lgkmcnt(0)")
    srd(a, sWQ, 70, 512*8192)
    srd(a, sX, 64, 4096)
    a(f"buffer_load_dwordx4 v[44:47], v4, s[{sWQ}:{sWQ+3}], s56 offen")
    a(f"buffer_load_dwordx4 v[48:51], v4, s[{sWQ}:{sWQ+3}], s57 offen")
    a(f"buffer_load_dwordx4 v[24:27], v6, s[{sX}:{sX+3}], s63 offen")
    a(f"s_add_u32 s{sK}, s66, s7"); a(f"s_addc_u32 s{sK+1}, s67, 0"); a(f"s_and_b32 s{sK+1}, s{sK+1}, 0xffff")
    a(f"s_mov_b32 s{sK+2}, 0x400000"); a(f"s_mov_b32 s{sK+3}, 0x00020000")
    a(f"s_add_u32 s{sV}, s68, s7"); a(f"s_addc_u32 s{sV+1}, s69, 0"); a(f"s_and_b32 s{sV+1}, s{sV+1}, 0xffff")
    a(f"s_mov_b32 s{sV+2}, 0x400000"); a(f"s_mov_b32 s{sV+3}, 0x00020000")
    srd(a, sWS, 86, WS_SIZE)
    srd(a, sW1, 72, 4096*1024)
    srd(a, sW2, 78, 512*3584)
    srd(a, sW3, 80, 1792*1024)
    srd(a, sOUT, 82, 4096)
    srd(a, sDBG, 84, 256)
    a("s_mov_b32 s4, s84"); a("s_mov_b32 s5, s85")
    a("s_mov_b32 s8, s86"); a("s_mov_b32 s9, s87")
    a("s_cmp_lt_u32 s11, 16")
    a("s_cbranch_scc1 L_p1")
    srd(a, sW1, 76, 512*3584)
    a("L_p1:")
    stamp(a)

    def issue(n):
        slot = vB + 32*(n % NSLOT)
        st = n % 8
        a(f"s_add_u32 s7, s6, {st*stepstride}")
        if n < 8:
            for tb in range(2):
                for t in range(4):
                    r = slot + 16*tb + 4*t
                    a(f"buffer_load_dwordx4 v[{r}:{r+3}], v{vKo}, s[{sK}:{sK+3}], s7 offen offset:{1024*tb + 64*t}{NT}")
        else:
            for e in range(8):
                r = slot + 4*e
                a(f"buffer_load_dwordx4 v[{r}:{r+3}], v{vVo}, s[{sV}:{sV+3}], s7 offen offset:{256*e}{NT}")

    a("s_cmp_eq_u32 s3, 0")
    a("s_cbranch_scc1 L_w0clr")
    for n in range(PRE): issue(n)
    a(f"s_waitcnt vmcnt({8*PRE})")
    a("s_branch L_qgo")
    a("L_w0clr:")
    for i in range(4): a(f"v_mov_b32 v{72+i}, -1")
    a("s_lshl_b32 s56, s14, 11"); a(f"s_add_u32 s56, s56, {WS_PO}")
    a(f"buffer_store_dwordx4 v[72:75], v6, s[{sWS}:{sWS+3}], s56 offen sc1")
    a(f"buffer_store_dwordx4 v[72:75], v6, s[{sWS}:{sWS+3}], s56 offen offset:1024 sc1")
    a("v_lshrrev_b32 v4, 3, v1"); a("v_lshlrev_b32 v4, 11, v4")
    a("v_and_b32 v5, 7, v1"); a("v_lshl_add_u32 v4, v5, 4, v4")
    a("s_lshl_b32 s56, s10, 13"); a("s_lshl_b32 s57, s11, 7"); a("s_add_u32 s56, s56, s57"); a(f"s_add_u32 s56, s56, {WS_AO}")
    a("v_add_u32 v4, s56, v4")
    a("s_lshl_b32 s56, s14, 5"); a(f"s_add_u32 s56, s56, {WS_ML - 512}")
    a("v_add_u32 v5, s56, v6")
    a("v_cmp_gt_u32 vcc, 32, v1")
    a("v_cndmask_b32 v4, v5, v4, vcc")
    a("s_lshl_b32 s56, s2, 7"); a(f"s_add_u32 s56, s56, {WS_MB}")
    a("v_mov_b32 v5, s56")
    a("v_cmp_eq_u32 vcc, 34, v1")
    a("v_cndmask_b32 v4, v4, v5, vcc")
    a("s_mov_b32 s60, 0"); a("s_mov_b32 s61, 7")
    a("s_cmp_lt_u32 s11, 16"); a("s_cselect_b32 s60, -1, 0")
    a("s_mov_b64 s[58:59], exec")
    a("s_mov_b64 exec, s[60:61]")
    a(f"buffer_store_dwordx4 v[72:75], v4, s[{sWS}:{sWS+3}], 0 offen sc1")
    a("s_mov_b64 exec, s[58:59]")
    a("s_cmp_lt_u32 s11, 16"); a("s_cbranch_scc1 L_nodp")
    a("s_cmp_ge_u32 s11, 30"); a("s_cbranch_scc1 L_nodp")
    a("s_lshl_b32 s56, s15, 13"); a(f"s_add_u32 s56, s56, {WS_DP}")
    for c in range(8):
        if c == 4: a("s_add_u32 s56, s56, 4096")
        a(f"buffer_store_dwordx4 v[72:75], v6, s[{sWS}:{sWS+3}], s56 offen offset:{1024*(c%4)} sc1")
    a("s_waitcnt vmcnt(11)")
    a("s_branch L_qgo")
    a("L_nodp:")
    a("s_waitcnt vmcnt(3)")
    a("L_qgo:")
    stamp(a, 13)
    a("s_lshl_b32 s56, s3, 11"); a(f"s_add_u32 s56, s56, {L_QW}")
    a("v_add_u32 v4, s56, v6")
    a("ds_write_b128 v4, v[44:47]")
    a("ds_write_b128 v4, v[48:51] offset:1024")
    layernorm(a, 24, 28, 36)
    a("s_cmp_ge_u32 s3, 4")
    a("s_cbranch_scc1 L_q_skip")
    a("v_add_u32 v4, s63, v6")
    a(f"ds_write_b128 v4, v[24:27] offset:{L_XN}")
    a("L_q_skip:")
    gemv_addr(a, 76, 77, L_QW, L_XN)
    a("s_waitcnt lgkmcnt(0)")
    a("s_barrier")
    gemv_wave(a, 52, 76, 77, 56)
    a("s_lshl_b32 s56, s3, 8"); a(f"s_add_u32 s56, s56, {L_RED}")
    a("v_lshlrev_b32 v4, 6, v2")
    a("v_lshl_add_u32 v4, v3, 4, v4")
    a("v_add_u32 v4, s56, v4")
    a("v_cmp_gt_u32 vcc, 4, v2")
    a("s_and_saveexec_b64 s[58:59], vcc")
    a("ds_write_b128 v4, v[52:55]")
    a("s_mov_b64 exec, s[58:59]")
    a("s_waitcnt lgkmcnt(0)")
    a("s_barrier")
    a("s_cmp_eq_u32 s3, 0")
    a("s_cbranch_scc1 L_qw0")
    a("s_barrier")
    for n in range(PRE, NSLOT): issue(n)
    a("s_branch L_qwait")
    a("L_qw0:")
    a("v_lshlrev_b32 v4, 2, v1")
    for w in range(8):
        a(f"ds_read_b32 v{28+w}, v4 offset:{L_RED + w*256}")
    a("s_waitcnt lgkmcnt(0)")
    for w in range(1, 8):
        a(f"v_add_f32 v28, v28, v{28+w}")
    a("v_cvt_pk_bf16_f32 v28, v28, v28")
    a("v_lshlrev_b32 v4, 1, v1")
    a(f"ds_write_b16 v4, v28 offset:{L_QS}")
    a("s_waitcnt lgkmcnt(0)")
    a("v_and_b32 v5, 7, v1")
    a("v_lshlrev_b32 v4, 4, v5")
    a(f"ds_read_b128 v[28:31], v4 offset:{L_QS}")
    a("v_lshrrev_b32 v4, 1, v5"); a("v_lshlrev_b32 v4, 13, v4")
    a("v_and_b32 v5, 1, v5"); a("v_lshl_add_u32 v4, v5, 4, v4")
    a("s_lshl_b32 s56, s10, 10"); a("s_lshl_b32 s57, s11, 5"); a("s_add_u32 s56, s56, s57")
    if WS_Q: a(f"s_add_u32 s56, s56, {WS_Q}")
    a(f"s_lshl_b32 s57, s10, {CSH}")
    a("s_mov_b32 s62, 1")
    a("s_waitcnt lgkmcnt(0)")
    a("s_mov_b64 s[58:59], exec")
    a("s_mov_b64 exec, 0xff")
    a(f"buffer_store_dwordx4 v[28:31], v4, s[{sWS}:{sWS+3}], s56 offen sc1")
    a("s_mov_b64 exec, s[58:59]")
    a("s_barrier")
    a("s_waitcnt vmcnt(0)")
    stamp(a, 10)
    a("s_atomic_add s62, s[4:5], s57 glc")
    a("s_waitcnt lgkmcnt(0)")
    stamp(a, 11)
    a("s_cmp_lg_u32 s62, 31")
    a("s_cbranch_scc1 L_notlast")
    a("s_lshl_b32 s56, s10, 7"); a(f"s_add_u32 s56, s56, {WS_MB}")
    a("s_mov_b32 s62, 2")
    for i in range(32):
        a("s_atomic_add s62, s[8:9], s56")
        if i < 31: a("s_add_u32 s56, s56, 1024")
    a("L_notlast:")
    a("s_lshl_b32 s63, s2, 7"); a(f"s_add_u32 s63, s63, {WS_MB}")
    a("s_mov_b32 s62, 0")
    a("L_qpoll:")
    a("s_load_dword s56, s[8:9], s63 glc")
    a("s_waitcnt lgkmcnt(0)")
    a("s_cmp_eq_u32 s56, 1")
    a("s_cbranch_scc1 L_qgot")
    a("s_sleep 1")
    a("s_add_u32 s62, s62, 1")
    a(f"s_cmp_lt_u32 s62, {SPIN}")
    a("s_cbranch_scc1 L_qpoll")
    a("L_qgot:")
    stamp(a, 12)
    a("L_qwait:")
    a("s_barrier")
    stamp(a)
    a("s_lshl_b32 s56, s12, 13"); a("s_lshl_b32 s57, s10, 10"); a("s_add_u32 s56, s56, s57")
    a("s_lshl_b32 s57, s3, 7"); a("s_add_u32 s56, s56, s57")
    if WS_Q: a(f"s_add_u32 s56, s56, {WS_Q}")
    a("s_add_u32 s57, s56, 64")
    a("s_load_dwordx16 s[64:79], s[8:9], s56 glc")
    a("s_load_dwordx16 s[80:95], s[8:9], s57 glc")
    a("s_lshl_b32 s56, s3, 7"); a(f"s_add_u32 s56, s56, {L_QL}")
    a("v_lshlrev_b32 v4, 2, v1")
    a("v_add_u32 v4, s56, v4")
    a("s_waitcnt lgkmcnt(0)")
    for i in range(32):
        a(f"v_writelane_b32 v5, s{64+i}, {i}")
    a("s_mov_b64 s[58:59], exec")
    a("s_mov_b32 exec_lo, -1"); a("s_mov_b32 exec_hi, 0")
    a("ds_write_b32 v4, v5")
    a("s_mov_b64 exec, s[58:59]")
    a("v_and_b32 v7, 3, v2")
    a("v_lshlrev_b32 v7, 8, v7")
    a("v_lshl_add_u32 v7, v3, 4, v7")
    a("s_waitcnt lgkmcnt(0)")
    a("s_barrier")
    for t in range(4):
        a(f"ds_read_b128 v[{vQ+4*t}:{vQ+4*t+3}], v7 offset:{L_QL + 64*t}")
    a("s_cmp_lg_u32 s3, 0")
    a("s_cbranch_scc1 L_w0pf")
    for n in range(NSLOT): issue(n)
    a("L_w0pf:")
    a("s_cmp_ge_u32 s11, 30"); a("s_cbranch_scc1 L_dma_done")
    a("s_cmp_ge_u32 s11, 16"); a("s_cbranch_scc1 L_dma_f")
    a("v_lshlrev_b32 v4, 15, v3")
    a("v_bfe_u32 v5, v1, 2, 2")
    a("v_lshl_add_u32 v4, v5, 13, v4")
    a("v_and_b32 v5, 3, v1")
    a("v_lshl_add_u32 v4, v5, 4, v4")
    a("s_lshl_b32 s56, s10, 9"); a("s_lshr_b32 s57, s3, 1"); a("s_lshl_b32 s57, s57, 7"); a("s_add_u32 s56, s56, s57")
    a("s_and_b32 s57, s3, 1"); a("s_lshl_b32 s57, s57, 2"); a("s_add_u32 s56, s56, s57")
    a("s_lshl_b32 s56, s56, 10"); a("s_lshl_b32 s57, s11, 6"); a("s_add_u32 s56, s56, s57")
    a("s_lshl_b32 s57, s3, 12"); a(f"s_add_u32 s57, s57, {L_W1}")
    for c in range(4):
        a("s_mov_b32 m0, s57")
        a(f"buffer_load_dwordx4 v4, s[{sW1}:{sW1+3}], s56 offen lds")
        if c < 3:
            a("s_add_u32 s56, s56, 1024"); a("s_add_u32 s57, s57, 1024")
    a("s_branch L_dma_done")
    a("L_dma_f:")
    a("v_lshrrev_b32 v4, 1, v1")
    a("s_movk_i32 s56, 3584")
    a("v_mul_lo_u32 v4, v4, s56")
    a("v_and_b32 v5, 1, v1")
    a("v_lshl_add_u32 v4, v5, 4, v4")
    a(f"s_mul_i32 s56, s3, {64*3584}"); a("s_lshl_b32 s57, s15, 5"); a("s_add_u32 s56, s56, s57")
    a("s_lshl_b32 s57, s3, 11"); a(f"s_add_u32 s57, s57, {L_W1}")
    a("s_lshl_b32 s63, s15, 14"); a("s_lshl_b32 s62, s3, 11"); a("s_add_u32 s63, s63, s62")
    a("v_lshlrev_b32 v5, 4, v1")
    for c in range(2):
        a("s_mov_b32 m0, s57")
        a(f"buffer_load_dwordx4 v4, s[{sW1}:{sW1+3}], s56 offen lds")
        a("s_add_u32 s62, s57, 16384")
        a("s_mov_b32 m0, s62")
        a(f"buffer_load_dwordx4 v4, s[{sW2}:{sW2+3}], s56 offen lds")
        a("s_add_u32 s62, s57, 32768")
        a("s_mov_b32 m0, s62")
        a(f"buffer_load_dwordx4 v5, s[{sW3}:{sW3+3}], s63 offen lds")
        if c == 0:
            a(f"s_add_u32 s56, s56, {32*3584}"); a("s_add_u32 s57, s57, 1024"); a("s_add_u32 s63, s63, 1024")
    a("L_dma_done:")
    a("s_waitcnt lgkmcnt(0)")
    stamp(a)

    for n in range(16):
        inflight_after = min(16, n + NSLOT) - (n + 1)
        a(f"s_waitcnt vmcnt({8*inflight_after})")
        slot = vB + 32*(n % NSLOT)
        if n < 8:
            for tb in range(2):
                d = vS + 8*n + 4*tb
                for t in range(4):
                    r = slot + 16*tb + 4*t
                    c = "0" if t == 0 else f"v[{d}:{d+3}]"
                    a(f"v_mfma_f32_16x16x32_bf16 v[{d}:{d+3}], v[{r}:{r+3}], v[{vQ+4*t}:{vQ+4*t+3}], {c}")
            if n + NSLOT < 16: issue(n + NSLOT)
            if n == 7:
                stamp(a)
                a("s_cmp_lg_u32 s3, 0"); a("s_cbranch_scc1 L_nocnt")
                a("s_cmp_lt_u32 s11, 16"); a("s_cbranch_scc1 L_nocnt")
                load_counters(a)
                a("L_nocnt:")
                for p in range(32):
                    s0, s1 = vS + 2*p, vS + 2*p + 1
                    a(f"v_cvt_pk_bf16_f32 v{vT}, v{s0}, v{s1}")
                    a(f"v_lshlrev_b32 v{s0}, 16, v{vT}")
                    a(f"v_and_b32 v{s1}, 0xffff0000, v{vT}")
                    a(f"v_mul_f32 v{s0}, s{sSC}, v{s0}")
                    a(f"v_mul_f32 v{s1}, s{sSC}, v{s1}")
                    a(f"v_cvt_pk_bf16_f32 v{vT}, v{s0}, v{s1}")
                    a(f"v_lshlrev_b32 v{s0}, 16, v{vT}")
                    a(f"v_and_b32 v{s1}, 0xffff0000, v{vT}")
                    if p == 0:
                        a(f"v_max_f32 v{vM}, v{s0}, v{s1}")
                    else:
                        a(f"v_max3_f32 v{vM}, v{s0}, v{s1}, v{vM}")
                a(f"v_mov_b32 v{vM+1}, v{vM}")
                a(f"v_permlane16_swap_b32 v{vM}, v{vM+1}")
                a(f"v_max_f32 v{vM}, v{vM}, v{vM+1}")
                a(f"v_mov_b32 v{vM+1}, v{vM}")
                a(f"v_permlane32_swap_b32 v{vM}, v{vM+1}")
                a(f"v_max_f32 v{vM}, v{vM}, v{vM+1}")
                a(f"v_mul_f32 v{vM+1}, s{sL2}, v{vM}")
                a(f"v_mov_b32 v{vM+2}, 0")
                for i in range(64):
                    s0 = vS + i
                    a(f"v_fma_f32 v{s0}, v{s0}, s{sL2}, -v{vM+1}")
                    a(f"v_exp_f32 v{s0}, v{s0}")
                    a(f"v_add_f32 v{vM+2}, v{vM+2}, v{s0}")
                for st in range(8):
                    for p in range(4):
                        a(f"v_cvt_pk_bf16_f32 v{vS+8*st+p}, v{vS+8*st+2*p}, v{vS+8*st+2*p+1}")
        else:
            st = n - 8
            pb = vS + 8*st
            for c in range(4):
                for hl in range(2):
                    e = 2*c + hl
                    tt = vT + 4*(e % 4)
                    for p in range(4):
                        a(f"v_perm_b32 v{tt+p}, v{slot+4*(2*p+1)+c}, v{slot+4*(2*p)+c}, s{sPL+hl}")
                    acc = vS + 8*e + 4
                    cc = "0" if st == 0 else f"v[{acc}:{acc+3}]"
                    a(f"v_mfma_f32_16x16x32_bf16 v[{acc}:{acc+3}], v[{tt}:{tt+3}], v[{pb}:{pb+3}], {cc}")
            if n + NSLOT < 16: issue(n + NSLOT)
    stamp(a)
    a(f"v_mov_b32 v{vM+1}, v{vM+2}")
    a(f"v_permlane16_swap_b32 v{vM+2}, v{vM+1}")
    a(f"v_add_f32 v{vM+2}, v{vM+2}, v{vM+1}")
    a(f"v_mov_b32 v{vM+1}, v{vM+2}")
    a(f"v_permlane32_swap_b32 v{vM+2}, v{vM+1}")
    a(f"v_add_f32 v{vM+1}, v{vM+2}, v{vM+1}")
    a("s_lshl_b32 s56, s3, 11")
    a("v_lshlrev_b32 v6, 9, v2")
    a("v_lshl_add_u32 v6, v3, 4, v6")
    a("v_add_u32 v6, s56, v6")
    a("s_lshl_b32 s57, s3, 3")
    a("v_lshlrev_b32 v7, 6, v2")
    a("v_add_u32 v7, s57, v7")
    a("v_cmp_gt_u32 vcc, 4, v2")
    a("s_and_saveexec_b64 s[58:59], vcc")
    for e in range(8):
        acc = vS + 8*e + 4
        a(f"ds_write_b128 v6, v[{acc}:{acc+3}] offset:{L_O + e*64}")
    a(f"ds_write_b64 v7, v[{vM}:{vM+1}] offset:{L_ML}")
    a("s_mov_b64 exec, s[58:59]")
    a("s_cmp_lg_u32 s3, 0"); a("s_cbranch_scc1 L_cnt_done")
    a("s_cmp_lt_u32 s11, 16"); a("s_cbranch_scc1 L_cnt_done")
    a("s_mov_b32 s62, 0")
    a("L_cnt:")
    a("s_waitcnt lgkmcnt(0)")
    a("s_and_b32 s56, s64, s65")
    a("s_or_b32 s57, s64, s65")
    for k in range(2, 8):
        a(f"s_and_b32 s56, s56, s{64+k}")
        a(f"s_or_b32 s57, s57, s{64+k}")
    a("s_cmp_lg_u32 s56, 32")
    a("s_cbranch_scc1 L_cnt_retry")
    a("s_cmp_eq_u32 s57, 32")
    a("s_cbranch_scc1 L_cnt_done")
    a("L_cnt_retry:")
    a("s_sleep 8")
    load_counters(a)
    a("s_add_u32 s62, s62, 1")
    a(f"s_cmp_lt_u32 s62, {SPIN}")
    a("s_cbranch_scc1 L_cnt")
    a("L_cnt_done:")
    a("s_waitcnt lgkmcnt(0)")
    a("s_barrier")
    a("s_cmp_ge_u32 s3, 2")
    a("s_cbranch_scc1 L_role")
    a("v_lshrrev_b32 v6, 5, v0")
    a("v_lshlrev_b32 v8, 6, v6")
    for i in range(4):
        a(f"ds_read_b128 v[{24+4*i}:{24+4*i+3}], v8 offset:{L_ML + 16*i}")
    a("v_lshlrev_b32 v9, 4, v0")
    for w in range(8):
        a(f"ds_read_b128 v[{40+4*w}:{43+4*w}], v9 offset:{L_O + w*2048}")
    a("s_waitcnt lgkmcnt(8)")
    a("v_max_f32 v10, v24, v26")
    for w in range(2, 8):
        a(f"v_max_f32 v10, v10, v{24+2*w}")
    a("v_mov_b32 v11, 0")
    for w in range(8):
        a(f"v_sub_f32 v{24+2*w}, v{24+2*w}, v10")
        a(f"v_mul_f32 v{24+2*w}, s{sL2}, v{24+2*w}")
        a(f"v_exp_f32 v{24+2*w}, v{24+2*w}")
        a(f"v_fmac_f32 v11, v{24+2*w}, v{25+2*w}")
    a("s_waitcnt lgkmcnt(0)")
    for c in range(4):
        a(f"v_mul_f32 v{12+c}, v24, v{40+c}")
    for w in range(1, 8):
        for c in range(4):
            a(f"v_fmac_f32 v{12+c}, v{24+2*w}, v{40+4*w+c}")
    for r in (10, 11, 12, 13, 14, 15):
        a(f"v_min_u32 v{r}, -2, v{r}")
    a("s_lshl_b32 s56, s14, 11"); a(f"s_add_u32 s56, s56, {WS_PO}")
    a(f"buffer_store_dwordx4 v[12:15], v9, s[{sWS}:{sWS+3}], s56 offen sc1")
    a("s_lshl_b32 s56, s14, 5"); a(f"s_add_u32 s56, s56, {WS_ML}")
    a("v_lshlrev_b32 v8, 3, v6")
    a("v_and_b32 v7, 31, v0")
    a("v_cmp_eq_u32 vcc, 0, v7")
    a("s_and_saveexec_b64 s[58:59], vcc")
    a(f"buffer_store_dwordx2 v[10:11], v8, s[{sWS}:{sWS+3}], s56 offen sc1")
    a("s_mov_b64 exec, s[58:59]")
    a("L_role:")
    stamp(a)
    a("s_cmp_ge_u32 s11, 30"); a("s_cbranch_scc1 L_Z")
    a("s_cmp_ge_u32 s11, 16"); a("s_cbranch_scc1 L_F")

    a("v_lshrrev_b32 v6, 7, v0")
    a("v_and_b32 v7, 127, v0")
    a("v_lshlrev_b32 v16, 14, v6")
    a("v_lshl_add_u32 v16, v7, 4, v16")
    a("v_lshlrev_b32 v17, 8, v6")
    a("v_lshrrev_b32 v18, 5, v7")
    a("v_lshl_add_u32 v17, v18, 3, v17")
    a("s_lshl_b32 s63, s10, 10"); a(f"s_add_u32 s63, s63, {WS_ML}")
    gemv_addr(a, 76, 77, L_W1, L_XN, rowsh=6)
    a("s_mov_b32 s62, 0")
    a("L_o1:")
    for s in range(8):
        a(f"buffer_load_dwordx2 v[{20+2*s}:{21+2*s}], v17, s[{sWS}:{sWS+3}], s63 offen offset:{32*s} sc1")
    a("s_waitcnt vmcnt(0)")
    sent_check(a, range(20, 36), 10)
    poll_tail(a, "L_o1")
    a("s_mov_b32 s62, 0")
    a("L_o2:")
    a("s_lshl_b32 s63, s10, 16"); a(f"s_add_u32 s63, s63, {WS_PO}")
    for s in range(8):
        if s % 2 == 0 and s > 0:
            a("s_add_u32 s63, s63, 4096")
        a(f"buffer_load_dwordx4 v[{36+4*s}:{39+4*s}], v16, s[{sWS}:{sWS+3}], s63 offen offset:{2048*(s%2)} sc1")
    a("s_waitcnt vmcnt(0)")
    sent_check(a, range(36, 68), 10)
    poll_tail(a, "L_o2")
    stamp(a)
    a("v_max_f32 v10, v20, v22")
    for s in range(2, 8):
        a(f"v_max_f32 v10, v10, v{20+2*s}")
    a("v_mov_b32 v11, 0")
    for s in range(8):
        a(f"v_sub_f32 v{20+2*s}, v{20+2*s}, v10")
        a(f"v_mul_f32 v{20+2*s}, s{sL2}, v{20+2*s}")
        a(f"v_exp_f32 v{20+2*s}, v{20+2*s}")
        a(f"v_fmac_f32 v11, v{20+2*s}, v{21+2*s}")
    for c in range(4):
        a(f"v_mul_f32 v{12+c}, v20, v{36+c}")
    for s in range(1, 8):
        for c in range(4):
            a(f"v_fmac_f32 v{12+c}, v{20+2*s}, v{36+4*s+c}")
    a("v_rcp_f32 v10, v11")
    for c in range(4):
        a(f"v_mul_f32 v18, v{12+c}, v10")
        a(f"v_fma_f32 v19, -v18, v11, v{12+c}")
        a(f"v_fma_f32 v{12+c}, v19, v10, v18")
    a("v_cvt_pk_bf16_f32 v12, v12, v13")
    a("v_cvt_pk_bf16_f32 v13, v14, v15")
    a("v_lshlrev_b32 v10, 3, v0")
    a(f"ds_write_b64 v10, v[12:13] offset:{L_XN}")
    a("s_waitcnt lgkmcnt(0)")
    a("s_barrier")
    gemv_wave(a, 36, 76, 77, 40, woff=0, rowb=64)
    gemv_wave(a, 56, 76, 77, 60, woff=32, rowb=64)
    a("s_lshl_b32 s56, s3, 9"); a(f"s_add_u32 s56, s56, {L_RED}")
    a("v_lshlrev_b32 v4, 7, v2")
    a("v_lshl_add_u32 v4, v3, 4, v4")
    a("v_add_u32 v4, s56, v4")
    a("v_cmp_gt_u32 vcc, 4, v2")
    a("s_and_saveexec_b64 s[58:59], vcc")
    a("ds_write_b128 v4, v[36:39]")
    a("ds_write_b128 v4, v[56:59] offset:64")
    a("s_mov_b64 exec, s[58:59]")
    a("s_waitcnt lgkmcnt(0)")
    a("s_barrier")
    a("s_cmp_lg_u32 s3, 0")
    a("s_cbranch_scc1 L_fin")
    a("v_and_b32 v5, 31, v1")
    a("v_lshlrev_b32 v4, 4, v5")
    for w in range(8):
        a(f"ds_read_b128 v[{8+4*w}:{11+4*w}], v4 offset:{L_RED + w*512}")
    a("v_lshrrev_b32 v4, 3, v5"); a("v_lshlrev_b32 v4, 11, v4")
    a("v_and_b32 v5, 7, v5"); a("v_lshl_add_u32 v4, v5, 4, v4")
    a("s_lshl_b32 s56, s10, 13"); a("s_lshl_b32 s57, s11, 7"); a("s_add_u32 s56, s56, s57"); a(f"s_add_u32 s56, s56, {WS_AO}")
    a("s_waitcnt lgkmcnt(0)")
    for w in range(1, 8):
        for c in range(4):
            a(f"v_add_f32 v{8+c}, v{8+c}, v{8+4*w+c}")
    for c in range(4):
        a(f"v_min_u32 v{8+c}, -2, v{8+c}")
    a("s_mov_b32 exec_lo, -1"); a("s_mov_b32 exec_hi, 0")
    a(f"buffer_store_dwordx4 v[8:11], v4, s[{sWS}:{sWS+3}], s56 offen sc1")
    a("s_mov_b64 exec, -1")
    a("s_branch L_fin")

    a("L_F:")
    a("v_lshlrev_b32 v16, 4, v0")
    a("v_lshlrev_b32 v17, 3, v0")
    a(f"buffer_load_dwordx2 v[18:19], v17, s[{sX}:{sX+3}], 0 offen")
    gemv_addr(a, 76, 77, L_W1, L_XN)
    a("s_and_b32 s63, s15, 7"); a("s_lshl_b32 s63, s63, 13"); a(f"s_add_u32 s63, s63, {WS_AO}")
    a("s_mov_b32 s62, 0")
    a("L_f1:")
    a(f"buffer_load_dwordx4 v[36:39], v16, s[{sWS}:{sWS+3}], s63 offen sc1")
    a("s_waitcnt vmcnt(0)")
    sent_check(a, range(36, 40), 10)
    poll_tail(a, "L_f1")
    a("s_mov_b32 s62, 0")
    a("L_f2:")
    a(f"s_mov_b32 s63, {WS_AO}")
    for k in range(8):
        a(f"buffer_load_dwordx4 v[{36+4*k}:{39+4*k}], v16, s[{sWS}:{sWS+3}], s63 offen sc1")
        if k < 7: a("s_add_u32 s63, s63, 8192")
    a("s_waitcnt vmcnt(0)")
    sent_check(a, range(36, 68), 10)
    poll_tail(a, "L_f2")
    stamp(a)
    for k in range(1, 8):
        for c in range(4):
            a(f"v_add_f32 v{36+c}, v{36+c}, v{36+4*k+c}")
    for c in range(4): rbf(a, 36+c)
    a("v_lshlrev_b32 v40, 16, v18"); a("v_and_b32 v41, 0xffff0000, v18")
    a("v_lshlrev_b32 v42, 16, v19"); a("v_and_b32 v43, 0xffff0000, v19")
    for c in range(4): a(f"v_add_f32 v{36+c}, v{36+c}, v{40+c}")
    a("v_cvt_pk_bf16_f32 v36, v36, v37")
    a("v_cvt_pk_bf16_f32 v37, v38, v39")
    a(f"ds_write_b64 v17, v[36:37] offset:{L_HB}")
    a("s_waitcnt lgkmcnt(0)")
    a("s_barrier")
    a("s_cmp_ge_u32 s3, 4")
    a("s_cbranch_scc1 L_f_skip")
    a(f"ds_read_b128 v[16:19], v16 offset:{L_HB}")
    a("v_lshlrev_b32 v6, 4, v0")
    a("s_waitcnt lgkmcnt(0)")
    layernorm(a, 16, 20, 28)
    a(f"ds_write_b128 v6, v[16:19] offset:{L_XN}")
    a("L_f_skip:")
    a("s_waitcnt lgkmcnt(0)")
    a("s_barrier")
    gemv_wave(a, 36, 76, 77, 40)
    gemv_wave(a, 56, 76, 77, 60, woff=16384)
    a("s_lshl_b32 s56, s3, 8"); a(f"s_add_u32 s56, s56, {L_RED}")
    a("v_lshlrev_b32 v4, 6, v2")
    a("v_lshl_add_u32 v4, v3, 4, v4")
    a("v_add_u32 v4, s56, v4")
    a("v_cmp_gt_u32 vcc, 4, v2")
    a("s_and_saveexec_b64 s[58:59], vcc")
    a("ds_write_b128 v4, v[36:39]")
    a("ds_write_b128 v4, v[56:59] offset:2048")
    a("s_mov_b64 exec, s[58:59]")
    a("s_waitcnt lgkmcnt(0)")
    a("s_barrier")
    a("s_cmp_ge_u32 s3, 1")
    a("s_cbranch_scc1 L_f_skip2")
    a("v_lshlrev_b32 v4, 2, v1")
    for w in range(8):
        a(f"ds_read_b32 v{8+w}, v4 offset:{L_RED + w*256}")
        a(f"ds_read_b32 v{16+w}, v4 offset:{L_RED + 2048 + w*256}")
    a("s_waitcnt lgkmcnt(0)")
    for w in range(1, 8):
        a(f"v_add_f32 v8, v8, v{8+w}")
        a(f"v_add_f32 v16, v16, v{16+w}")
    rbf(a, 8); rbf(a, 16)
    a("v_mul_f32 v9, v8, v8")
    a("v_mul_f32 v9, 0x3d372713, v9")
    a("v_fma_f32 v9, v9, v8, v8")
    a("v_mul_f32 v9, 0xc0135761, v9")
    a("v_exp_f32 v9, v9")
    a("v_add_f32 v9, 1.0, v9")
    a("v_rcp_f32 v10, v9")
    a("v_mul_f32 v11, v8, v10")
    a("v_fma_f32 v12, -v11, v9, v8")
    a("v_fma_f32 v12, v12, v10, v11")
    a("v_cmp_gt_f32 vcc, 0x7f000000, v9")
    a("v_cndmask_b32 v11, v11, v12, vcc")
    rbf(a, 11)
    a("v_mul_f32 v11, v11, v16")
    a("v_cvt_pk_bf16_f32 v11, v11, v11")
    a("v_lshlrev_b32 v4, 1, v1")
    a(f"ds_write_b16 v4, v11 offset:{L_ACT}")
    a("L_f_skip2:")
    a("s_waitcnt lgkmcnt(0)")
    a("s_barrier")
    a("v_and_b32 v5, 3, v2")
    a("v_lshlrev_b32 v4, 5, v5")
    a("v_lshl_add_u32 v4, v3, 3, v4")
    a(f"ds_read_b64 v[8:9], v4 offset:{L_ACT}")
    a("v_lshrrev_b32 v6, 2, v2")
    a("v_lshl_add_u32 v6, v3, 2, v6")
    a("v_lshlrev_b32 v6, 10, v6")
    a("v_lshl_add_u32 v6, v5, 3, v6")
    a("s_lshl_b32 s56, s3, 7"); a(f"s_add_u32 s56, s56, {L_W3}")
    a("v_add_u32 v6, s56, v6")
    for m in range(4):
        a(f"ds_read_b64_tr_b16 v[{10+2*m}:{11+2*m}], v6 offset:{32*m}")
    a("s_waitcnt lgkmcnt(0)")
    for m in range(4):
        a(f"v_mfma_f32_16x16x16_bf16 v[{20+4*m}:{23+4*m}], v[{10+2*m}:{11+2*m}], v[8:9], 0")
    a("v_lshlrev_b32 v4, 11, v2")
    a("v_lshl_add_u32 v4, v3, 4, v4")
    a("s_lshl_b32 s56, s15, 13"); a("s_lshl_b32 s57, s3, 8"); a("s_add_u32 s56, s56, s57"); a(f"s_add_u32 s56, s56, {WS_DP}")
    for r in range(20, 36):
        a(f"v_min_u32 v{r}, -2, v{r}")
    a("v_cmp_gt_u32 vcc, 4, v2")
    a("s_and_saveexec_b64 s[58:59], vcc")
    for m in range(4):
        a(f"buffer_store_dwordx4 v[{20+4*m}:{23+4*m}], v4, s[{sWS}:{sWS+3}], s56 offen offset:{64*m} sc1")
    a("s_mov_b64 exec, s[58:59]")
    a("s_branch L_fin")

    a("L_Z:")
    a("v_and_b32 v4, 31, v0")
    a("v_lshrrev_b32 v5, 5, v0")
    a("v_lshlrev_b32 v16, 13, v5")
    a("v_lshl_add_u32 v16, v4, 4, v16")
    a("v_lshlrev_b32 v17, 4, v4")
    a("v_lshlrev_b32 v18, 3, v4")
    a("s_lshl_b32 s57, s15, 8")
    a(f"buffer_load_dwordx2 v[6:7], v18, s[{sX}:{sX+3}], s57 offen")
    a("s_mov_b32 s62, 0")
    a("L_z1:")
    a("s_lshl_b32 s63, s15, 9"); a(f"s_add_u32 s63, s63, {WS_AO}")
    for k in range(8):
        a(f"buffer_load_dwordx4 v[{36+4*k}:{39+4*k}], v17, s[{sWS}:{sWS+3}], s63 offen sc1")
        if k < 7: a("s_add_u32 s63, s63, 8192")
    a("s_waitcnt vmcnt(0)")
    sent_check(a, range(36, 68), 10)
    poll_tail(a, "L_z1", sleep=4)
    for k in range(1, 8):
        for c in range(4):
            a(f"v_add_f32 v{36+c}, v{36+c}, v{36+4*k+c}")
    for c in range(4): rbf(a, 36+c)
    a("v_lshlrev_b32 v40, 16, v6"); a("v_and_b32 v41, 0xffff0000, v6")
    a("v_lshlrev_b32 v42, 16, v7"); a("v_and_b32 v43, 0xffff0000, v7")
    for c in range(4): a(f"v_add_f32 v{72+c}, v{36+c}, v{40+c}")
    for c in range(4): rbf(a, 72+c)
    stamp(a)
    a("s_mov_b32 s62, 0")
    a("L_z2:")
    a("s_lshl_b32 s63, s15, 9"); a(f"s_add_u32 s63, s63, {WS_DP}")
    for k in range(7):
        a(f"buffer_load_dwordx4 v[{36+4*k}:{39+4*k}], v16, s[{sWS}:{sWS+3}], s63 offen sc1")
        if k < 6: a(f"s_add_u32 s63, s63, {16*8192}")
    a("s_waitcnt vmcnt(0)")
    sent_check(a, range(36, 64), 10)
    poll_tail(a, "L_z2")
    stamp(a)
    for k in range(1, 7):
        for c in range(4):
            a(f"v_add_f32 v{36+c}, v{36+c}, v{36+4*k+c}")
    a("v_lshlrev_b32 v6, 4, v0")
    a(f"ds_write_b128 v6, v[36:39] offset:{L_FIN}")
    a("s_waitcnt lgkmcnt(0)")
    a("s_barrier")
    a("s_cmp_lg_u32 s3, 0")
    a("s_cbranch_scc1 L_fin")
    for p in range(16):
        a(f"ds_read_b128 v[{80+4*p}:{83+4*p}], v17 offset:{L_FIN + 512*p}")
    a("s_waitcnt lgkmcnt(0)")
    for p in range(1, 16):
        for c in range(4):
            a(f"v_add_f32 v{80+c}, v{80+c}, v{80+4*p+c}")
    for c in range(4):
        rbf(a, 80+c)
        a(f"v_add_f32 v{80+c}, v{80+c}, v{72+c}")
    a("v_cvt_pk_bf16_f32 v80, v80, v81")
    a("v_cvt_pk_bf16_f32 v81, v82, v83")
    a("s_lshl_b32 s57, s15, 8")
    a("s_mov_b32 exec_lo, -1"); a("s_mov_b32 exec_hi, 0")
    a(f"buffer_store_dwordx2 v[80:81], v18, s[{sOUT}:{sOUT+3}], s57 offen")
    a("s_mov_b64 exec, -1")
    a("L_fin:")
    if STAMP:
        stamp_n[0] = 15
        stamp(a)
        a("s_cmp_lg_u32 s3, 0")
        a("s_cbranch_scc1 L_end")
        a("v_lshlrev_b32 v4, 2, v1")
        a("s_lshl_b32 s56, s2, 6"); a(f"s_add_u32 s56, s56, {WS_TS}")
        a("s_mov_b64 exec, 0xffff")
        a(f"buffer_store_dword v{vST}, v4, s[{sWS}:{sWS+3}], s56 offen")
    a("L_end:")
    a("s_endpgm")
    nv = NV + (1 if STAMP else 0)
    acc = (nv + 3) // 4 * 4
    desc = f""".section .rodata,"a"
.p2align 6
.amdhsa_kernel {name}
  .amdhsa_next_free_vgpr {nv}
  .amdhsa_next_free_sgpr 102
  .amdhsa_accum_offset {acc}
  .amdhsa_group_segment_fixed_size 0
  .amdhsa_kernarg_size 96
  .amdhsa_user_sgpr_count 2
  .amdhsa_user_sgpr_kernarg_segment_ptr 1
  .amdhsa_system_sgpr_workgroup_id_x 1
.end_amdhsa_kernel
"""
    body = a.finalize()
    out = HEADER + f"; @launch grid=(256,1,1) block=(512,1,1) lds={L_END}\n" + '.amdgcn_target "amdgcn-amd-amdhsa--gfx950"\n' + body + desc
    path = sys.argv[1] if len(sys.argv) > 1 else "k3.s"
    open(path, "w").write(out)
    print("wrote", path, len(out))

if __name__ == "__main__":
    main()
```

```python
import sys, os
from asmlib import Asm

NAME = "sequential_preLN__gqa_block_cached__geglu_ffn__decode"
HEADER = open("cdna_kernels/%s.s.ref" % NAME).read().split("; Override launch")[0]

WS_Q    = 0
WS_MB   = 0x8000
WS_PO   = 0x10000
WS_ML   = 0x90000
WS_AO   = 0xA0000
WS_DP   = 0xC0000
WS_TS   = 0x1A0000
WS_SIZE = 0x1B0000

LOG2E = 0x3fb8aa3b
SCALE = 0x3db504f3
EPS   = 0x3727c5ac

NSLOT = int(os.environ.get("NSLOT", 4))
NT = " nt" if os.environ.get("NT", "1") == "1" else ""
NTV = " nt" if os.environ.get("NTV", "0") == "1" else ""
STAMP = os.environ.get("STAMP", "0") == "1"
SPIN = 1 << 16
BAR = int(os.environ.get("BAR", 0))
DMA = os.environ.get("DMA", "ogd")
DNT = " nt" if os.environ.get("DNT", "1") == "1" else ""

L_O, L_ML, L_XN, L_HB, L_RED, L_ACT = 0, 16384, 20480, 24576, 28672, 32768
L_QS, L_QL, L_FIN, L_QW, L_W1 = 33024, 33280, 36864, 45056, 61440
L_W2, L_W3 = L_W1 + 16384, L_W1 + 32768
L_END = L_W1 + 49152

sK, sV, sWS, sX, sW1, sW2, sW3, sOUT, sDBG, sWQ = 16, 20, 24, 28, 32, 36, 40, 44, 48, 52
sPL, sPH, sSC, sL2 = 96, 97, 98, 99

vQ = 8; vS = 24; vB = 88; vT = vB + 32*NSLOT; vM = vT + 16; NV = vM + 8
vKo, vVo = vM + 4, vM + 5
vST = NV

def srd(a, d, ptr, nbytes):
    a(f"s_mov_b32 s{d}, s{ptr}")
    a(f"s_and_b32 s{d+1}, s{ptr+1}, 0xffff")
    a(f"s_mov_b32 s{d+2}, {nbytes}")
    a(f"s_mov_b32 s{d+3}, 0x00020000")

def wave_allreduce(a, v, t, op):
    for ctl in ("quad_perm:[1,0,3,2]", "quad_perm:[2,3,0,1]", "row_half_mirror", "row_mirror"):
        a(f"v_{op}_f32_dpp v{v}, v{v}, v{v} {ctl} row_mask:0xf bank_mask:0xf")
    a(f"v_mov_b32 v{t}, v{v}")
    a(f"v_permlane16_swap_b32 v{v}, v{t}")
    a(f"v_{op}_f32 v{v}, v{v}, v{t}")
    a(f"v_mov_b32 v{t}, v{v}")
    a(f"v_permlane32_swap_b32 v{v}, v{t}")
    a(f"v_{op}_f32 v{v}, v{v}, v{t}")

def rbf(a, v):
    a(f"v_cvt_pk_bf16_f32 v{v}, v{v}, v{v}")
    a(f"v_lshlrev_b32 v{v}, 16, v{v}")

def layernorm(a, src, f, t):
    for i in range(4):
        a(f"v_lshlrev_b32 v{f+2*i}, 16, v{src+i}")
        a(f"v_and_b32 v{f+2*i+1}, 0xffff0000, v{src+i}")
    a(f"v_add_f32 v{t}, v{f}, v{f+1}")
    for i in range(2, 8):
        a(f"v_add_f32 v{t}, v{t}, v{f+i}")
    wave_allreduce(a, t, t+1, "add")
    a(f"v_mul_f32 v{t}, 0x3b000000, v{t}")
    a(f"v_sub_f32 v{t+1}, v{f}, v{t}")
    a(f"v_mul_f32 v{t+2}, v{t+1}, v{t+1}")
    for i in range(1, 8):
        a(f"v_sub_f32 v{t+1}, v{f+i}, v{t}")
        a(f"v_fmac_f32 v{t+2}, v{t+1}, v{t+1}")
    wave_allreduce(a, t+2, t+1, "add")
    a(f"v_mul_f32 v{t+2}, 0x3b000000, v{t+2}")
    rbf(a, t)
    rbf(a, t+2)
    a(f"v_add_f32 v{t+2}, {EPS:#x}, v{t+2}")
    rbf(a, t+2)
    a(f"v_sqrt_f32 v{t+2}, v{t+2}")
    rbf(a, t+2)
    a(f"v_rcp_f32 v{t+3}, v{t+2}")
    for i in range(8):
        a(f"v_sub_f32 v{f+i}, v{f+i}, v{t}")
        rbf(a, f+i)
        a(f"v_mul_f32 v{t+4}, v{f+i}, v{t+3}")
        a(f"v_fma_f32 v{t+5}, -v{t+4}, v{t+2}, v{f+i}")
        a(f"v_fma_f32 v{f+i}, v{t+5}, v{t+3}, v{t+4}")
    for i in range(4):
        a(f"v_cvt_pk_bf16_f32 v{src+i}, v{f+2*i}, v{f+2*i+1}")

def gemv_wave(a, vD, vWaddr, vAaddr, vt, woff=0, rowb=32):
    for ks in range(2):
        a(f"ds_read_b64_tr_b16 v[{vt+8*ks}:{vt+8*ks+1}], v{vWaddr} offset:{woff + ks*32*rowb}")
        a(f"ds_read_b64_tr_b16 v[{vt+8*ks+2}:{vt+8*ks+3}], v{vWaddr} offset:{woff + ks*32*rowb + 4*rowb}")
        a(f"ds_read_b128 v[{vt+8*ks+4}:{vt+8*ks+7}], v{vAaddr} offset:{ks*64}")
    a("s_waitcnt lgkmcnt(0)")
    a(f"v_mfma_f32_16x16x32_bf16 v[{vD}:{vD+3}], v[{vt}:{vt+3}], v[{vt+4}:{vt+7}], 0")
    a(f"v_mfma_f32_16x16x32_bf16 v[{vD}:{vD+3}], v[{vt+8}:{vt+11}], v[{vt+12}:{vt+15}], v[{vD}:{vD+3}]")

def gemv_addr(a, vW, vA, wbase, abase, rowsh=5):
    a(f"v_lshrrev_b32 v4, 2, v2")
    a(f"v_lshl_add_u32 v4, v3, 3, v4")
    a(f"v_lshlrev_b32 v4, {rowsh}, v4")
    a(f"v_and_b32 v5, 3, v2")
    a(f"v_lshl_add_u32 v4, v5, 3, v4")
    a(f"s_lshl_b32 s56, s3, {6+rowsh}")
    a(f"s_add_u32 s56, s56, {wbase}")
    a(f"v_add_u32 v{vW}, s56, v4")
    a(f"v_lshlrev_b32 v4, 10, v5")
    a(f"v_lshl_add_u32 v4, v3, 4, v4")
    a(f"s_lshl_b32 s56, s3, 7")
    a(f"s_add_u32 s56, s56, {abase}")
    a(f"v_add_u32 v{vA}, s56, v4")

stamp_n = [0]
def stamp(a, n=None):
    if not STAMP: return
    if n is None:
        n = stamp_n[0]; stamp_n[0] += 1
    a("s_memrealtime s[100:101]")
    a("s_waitcnt lgkmcnt(0)")
    a(f"v_writelane_b32 v{vST}, s100, {n}")

def sent_check(a, regs, vt):
    regs = list(regs)
    a(f"v_max_u32 v{vt}, v{regs[0]}, v{regs[1]}")
    rest = regs[2:]
    while len(rest) >= 2:
        a(f"v_max3_u32 v{vt}, v{rest[0]}, v{rest[1]}, v{vt}"); rest = rest[2:]
    if rest:
        a(f"v_max_u32 v{vt}, v{rest[0]}, v{vt}")
    a(f"v_cmp_eq_u32 vcc, -1, v{vt}")

def poll_tail(a, lab, sleep=1):
    a("s_cmp_eq_u64 vcc, 0")
    a(f"s_cbranch_scc1 {lab}_done")
    a(f"s_sleep {sleep}")
    a("s_add_u32 s62, s62, 1")
    a(f"s_cmp_lt_u32 s62, {SPIN}")
    a(f"s_cbranch_scc1 {lab}")
    a(f"{lab}_done:")

CSH = int(os.environ.get("CSH", 5))
PRE = int(os.environ.get("PRE", 1))
def load_counters(a):
    if CSH == 2:
        a("s_load_dwordx8 s[64:71], s[4:5], 0 glc")
    else:
        for k in range(8):
            a(f"s_load_dword s{64+k}, s[4:5], {k << CSH} glc")

def main():
    a = Asm()
    name = NAME + "_kernel"
    a.raw(".text"); a.raw(f".globl {name}"); a.raw(".p2align 8"); a.raw(f".type {name},@function"); a.raw(f"{name}:")
    a("s_cmp_ge_u32 s2, 256")
    a("s_cbranch_scc1 L_end")
    a("s_load_dwordx16 s[64:79], s[0:1], 0")
    a("s_load_dwordx8 s[80:87], s[0:1], 64")
    if STAMP:
        a(f"v_mov_b32 v{vST}, 0")
    a("v_and_b32 v1, 63, v0")
    a("v_lshrrev_b32 v2, 6, v0")
    a("v_readfirstlane_b32 s3, v2")
    a("v_and_b32 v2, 15, v1")
    a("v_lshrrev_b32 v3, 4, v1")
    a("s_lshr_b32 s11, s2, 3")
    if os.environ.get("KPERM"):
        a("s_add_u32 s10, s2, s11"); a("s_and_b32 s10, s10, 7")
        a("s_lshl_b32 s2, s11, 3"); a("s_or_b32 s2, s2, s10")
    else:
        a("s_and_b32 s10, s2, 7")
    a("s_and_b32 s12, s11, 3")
    a("s_lshr_b32 s13, s11, 2")
    a("s_lshl_b32 s7, s12, 3")
    a("s_add_u32 s7, s7, s10")
    a("s_lshl_b32 s7, s7, 22")
    a("v_lshrrev_b32 v6, 2, v2")
    a("v_lshlrev_b32 v6, 3, v6")
    a("v_and_b32 v7, 3, v2")
    a("v_add_u32 v6, v6, v7")
    a("v_lshlrev_b32 v6, 8, v6")
    a(f"v_lshl_add_u32 v{vKo}, v3, 4, v6")
    a("v_lshlrev_b32 v6, 11, v3")
    a(f"v_lshl_add_u32 v{vVo}, v2, 4, v6")
    a("s_lshl_b32 s6, s13, 19")
    a("s_lshl_b32 s56, s3, 13")
    a("s_add_u32 s6, s6, s56")
    stepstride = 65536
    a(f"s_mov_b32 s{sPL}, 0x05040100"); a(f"s_mov_b32 s{sPH}, 0x07060302")
    a(f"s_mov_b32 s{sSC}, {SCALE:#x}"); a(f"s_mov_b32 s{sL2}, {LOG2E:#x}")
    a("s_lshl_b32 s14, s10, 2"); a("s_add_u32 s14, s14, s12"); a("s_lshl_b32 s14, s14, 3"); a("s_add_u32 s14, s14, s13")
    a("s_mul_i32 s15, s10, 14"); a("s_add_u32 s15, s15, s11"); a("s_sub_u32 s15, s15, 16")
    a("s_sub_u32 s56, s11, 30"); a("s_lshl_b32 s56, s56, 3"); a("s_add_u32 s56, s56, s10")
    a("s_cmp_ge_u32 s11, 30"); a("s_cselect_b32 s15, s56, s15")
    a("v_lshrrev_b32 v4, 1, v1")
    a("v_lshlrev_b32 v4, 13, v4")
    a("v_and_b32 v5, 1, v1")
    a("v_lshl_add_u32 v4, v5, 4, v4")
    a("s_lshl_b32 s56, s3, 19"); a("s_lshl_b32 s57, s10, 10"); a("s_add_u32 s56, s56, s57")
    a("s_lshl_b32 s57, s11, 5"); a("s_add_u32 s56, s56, s57")
    a(f"s_add_u32 s57, s56, {32*8192}")
    a("s_and_b32 s63, s3, 3"); a("s_lshl_b32 s63, s63, 10")
    a("v_lshlrev_b32 v6, 4, v1")
    a("s_waitcnt lgkmcnt(0)")
    srd(a, sWQ, 70, 512*8192)
    srd(a, sX, 64, 4096)
    a(f"buffer_load_dwordx4 v[44:47], v4, s[{sWQ}:{sWQ+3}], s56 offen")
    a(f"buffer_load_dwordx4 v[48:51], v4, s[{sWQ}:{sWQ+3}], s57 offen")
    a(f"buffer_load_dwordx4 v[24:27], v6, s[{sX}:{sX+3}], s63 offen")
    a(f"s_add_u32 s{sK}, s66, s7"); a(f"s_addc_u32 s{sK+1}, s67, 0"); a(f"s_and_b32 s{sK+1}, s{sK+1}, 0xffff")
    a(f"s_mov_b32 s{sK+2}, 0x400000"); a(f"s_mov_b32 s{sK+3}, 0x00020000")
    a(f"s_add_u32 s{sV}, s68, s7"); a(f"s_addc_u32 s{sV+1}, s69, 0"); a(f"s_and_b32 s{sV+1}, s{sV+1}, 0xffff")
    a(f"s_mov_b32 s{sV+2}, 0x400000"); a(f"s_mov_b32 s{sV+3}, 0x00020000")
    srd(a, sWS, 86, WS_SIZE)
    srd(a, sW1, 72, 4096*1024)
    srd(a, sW2, 78, 512*3584)
    srd(a, sW3, 80, 1792*1024)
    srd(a, sOUT, 82, 4096)
    srd(a, sDBG, 84, 256)
    a("s_mov_b32 s4, s84"); a("s_mov_b32 s5, s85")
    a("s_mov_b32 s8, s86"); a("s_mov_b32 s9, s87")
    a("s_cmp_lt_u32 s11, 16")
    a("s_cbranch_scc1 L_p1")
    srd(a, sW1, 76, 512*3584)
    a("L_p1:")
    stamp(a)

    def issue(n):
        slot = vB + 32*(n % NSLOT)
        st = n % 8
        a(f"s_add_u32 s7, s6, {st*stepstride}")
        if n < 8:
            for tb in range(2):
                for t in range(4):
                    r = slot + 16*tb + 4*t
                    a(f"buffer_load_dwordx4 v[{r}:{r+3}], v{vKo}, s[{sK}:{sK+3}], s7 offen offset:{1024*tb + 64*t}{NT}")
        else:
            for e in range(8):
                r = slot + 4*e
                a(f"buffer_load_dwordx4 v[{r}:{r+3}], v{vVo}, s[{sV}:{sV+3}], s7 offen offset:{256*e}{NTV}")

    a("s_cmp_eq_u32 s3, 0")
    a("s_cbranch_scc1 L_w0clr")
    for n in range(PRE): issue(n)
    a(f"s_waitcnt vmcnt({8*PRE})")
    a("s_branch L_qgo")
    a("L_w0clr:")
    for i in range(4): a(f"v_mov_b32 v{72+i}, -1")
    a("s_lshl_b32 s56, s14, 11"); a(f"s_add_u32 s56, s56, {WS_PO}")
    a(f"buffer_store_dwordx4 v[72:75], v6, s[{sWS}:{sWS+3}], s56 offen sc1")
    a(f"buffer_store_dwordx4 v[72:75], v6, s[{sWS}:{sWS+3}], s56 offen offset:1024 sc1")
    a("v_lshrrev_b32 v4, 3, v1"); a("v_lshlrev_b32 v4, 11, v4")
    a("v_and_b32 v5, 7, v1"); a("v_lshl_add_u32 v4, v5, 4, v4")
    a("s_lshl_b32 s56, s10, 13"); a("s_lshl_b32 s57, s11, 7"); a("s_add_u32 s56, s56, s57"); a(f"s_add_u32 s56, s56, {WS_AO}")
    a("v_add_u32 v4, s56, v4")
    a("s_lshl_b32 s56, s14, 5"); a(f"s_add_u32 s56, s56, {WS_ML - 512}")
    a("v_add_u32 v5, s56, v6")
    a("v_cmp_gt_u32 vcc, 32, v1")
    a("v_cndmask_b32 v4, v5, v4, vcc")
    a("s_lshl_b32 s56, s2, 7"); a(f"s_add_u32 s56, s56, {WS_MB}")
    a("v_mov_b32 v5, s56")
    a("v_cmp_eq_u32 vcc, 34, v1")
    a("v_cndmask_b32 v4, v4, v5, vcc")
    a("s_mov_b32 s60, 0"); a("s_mov_b32 s61, 7")
    a("s_cmp_lt_u32 s11, 16"); a("s_cselect_b32 s60, -1, 0")
    a("s_mov_b64 s[58:59], exec")
    a("s_mov_b64 exec, s[60:61]")
    a(f"buffer_store_dwordx4 v[72:75], v4, s[{sWS}:{sWS+3}], 0 offen sc1")
    a("s_mov_b64 exec, s[58:59]")
    a("s_cmp_lt_u32 s11, 16"); a("s_cbranch_scc1 L_nodp")
    a("s_cmp_ge_u32 s11, 30"); a("s_cbranch_scc1 L_nodp")
    a("s_lshl_b32 s56, s15, 13"); a(f"s_add_u32 s56, s56, {WS_DP}")
    for c in range(8):
        if c == 4: a("s_add_u32 s56, s56, 4096")
        a(f"buffer_store_dwordx4 v[72:75], v6, s[{sWS}:{sWS+3}], s56 offen offset:{1024*(c%4)} sc1")
    a("s_waitcnt vmcnt(11)")
    a("s_branch L_qgo")
    a("L_nodp:")
    a("s_waitcnt vmcnt(3)")
    a("L_qgo:")
    stamp(a, 13)
    a("s_lshl_b32 s56, s3, 11"); a(f"s_add_u32 s56, s56, {L_QW}")
    a("v_add_u32 v4, s56, v6")
    a("ds_write_b128 v4, v[44:47]")
    a("ds_write_b128 v4, v[48:51] offset:1024")
    layernorm(a, 24, 28, 36)
    a("s_cmp_ge_u32 s3, 4")
    a("s_cbranch_scc1 L_q_skip")
    a("v_add_u32 v4, s63, v6")
    a(f"ds_write_b128 v4, v[24:27] offset:{L_XN}")
    a("L_q_skip:")
    gemv_addr(a, 76, 77, L_QW, L_XN)
    a("s_waitcnt lgkmcnt(0)")
    a("s_barrier")
    gemv_wave(a, 52, 76, 77, 56)
    a("s_lshl_b32 s56, s3, 8"); a(f"s_add_u32 s56, s56, {L_RED}")
    a("v_lshlrev_b32 v4, 6, v2")
    a("v_lshl_add_u32 v4, v3, 4, v4")
    a("v_add_u32 v4, s56, v4")
    a("v_cmp_gt_u32 vcc, 4, v2")
    a("s_and_saveexec_b64 s[58:59], vcc")
    a("ds_write_b128 v4, v[52:55]")
    a("s_mov_b64 exec, s[58:59]")
    a("s_waitcnt lgkmcnt(0)")
    a("s_barrier")
    a("s_cmp_eq_u32 s3, 0")
    a("s_cbranch_scc1 L_qw0")
    a("s_barrier")
    for n in range(PRE, NSLOT): issue(n)
    a("s_branch L_qwait")
    a("L_qw0:")
    a("v_lshlrev_b32 v4, 2, v1")
    for w in range(8):
        a(f"ds_read_b32 v{28+w}, v4 offset:{L_RED + w*256}")
    a("s_waitcnt lgkmcnt(0)")
    for w in range(1, 8):
        a(f"v_add_f32 v28, v28, v{28+w}")
    a("v_cvt_pk_bf16_f32 v28, v28, v28")
    a("v_lshlrev_b32 v4, 1, v1")
    a(f"ds_write_b16 v4, v28 offset:{L_QS}")
    a("s_waitcnt lgkmcnt(0)")
    a("v_and_b32 v5, 7, v1")
    a("v_lshlrev_b32 v4, 4, v5")
    a(f"ds_read_b128 v[28:31], v4 offset:{L_QS}")
    a("v_lshrrev_b32 v4, 1, v5"); a("v_lshlrev_b32 v4, 13, v4")
    a("v_and_b32 v5, 1, v5"); a("v_lshl_add_u32 v4, v5, 4, v4")
    a("s_lshl_b32 s56, s10, 10"); a("s_lshl_b32 s57, s11, 5"); a("s_add_u32 s56, s56, s57")
    if WS_Q: a(f"s_add_u32 s56, s56, {WS_Q}")
    a(f"s_lshl_b32 s57, s10, {CSH}")
    a("s_mov_b32 s62, 1")
    a("s_waitcnt lgkmcnt(0)")
    a("s_mov_b64 s[58:59], exec")
    a("s_mov_b64 exec, 0xff")
    a(f"buffer_store_dwordx4 v[28:31], v4, s[{sWS}:{sWS+3}], s56 offen sc1")
    a("s_mov_b64 exec, s[58:59]")
    a("s_barrier")
    a("s_waitcnt vmcnt(0)")
    stamp(a, 10)
    a("s_atomic_add s62, s[4:5], s57 glc")
    a("s_waitcnt lgkmcnt(0)")
    stamp(a, 11)
    a("s_cmp_lg_u32 s62, 31")
    a("s_cbranch_scc1 L_notlast")
    a("s_lshl_b32 s56, s10, 7"); a(f"s_add_u32 s56, s56, {WS_MB}")
    a("s_mov_b32 s62, 2")
    for i in range(32):
        a("s_atomic_add s62, s[8:9], s56")
        if i < 31: a("s_add_u32 s56, s56, 1024")
    a("L_notlast:")
    a("s_lshl_b32 s63, s2, 7"); a(f"s_add_u32 s63, s63, {WS_MB}")
    a("s_mov_b32 s62, 0")
    if os.environ.get("NOQ"): a("s_branch L_qgot")
    a("L_qpoll:")
    a("s_load_dword s56, s[8:9], s63 glc")
    a("s_waitcnt lgkmcnt(0)")
    a("s_cmp_eq_u32 s56, 1")
    a("s_cbranch_scc1 L_qgot")
    a("s_sleep 1")
    a("s_add_u32 s62, s62, 1")
    a(f"s_cmp_lt_u32 s62, {SPIN}")
    a("s_cbranch_scc1 L_qpoll")
    a("L_qgot:")
    stamp(a, 12)
    a("L_qwait:")
    a("s_barrier")
    stamp(a)
    a("s_lshl_b32 s56, s12, 13"); a("s_lshl_b32 s57, s10, 10"); a("s_add_u32 s56, s56, s57")
    a("s_lshl_b32 s57, s3, 7"); a("s_add_u32 s56, s56, s57")
    if WS_Q: a(f"s_add_u32 s56, s56, {WS_Q}")
    a("s_add_u32 s57, s56, 64")
    a("s_load_dwordx16 s[64:79], s[8:9], s56 glc")
    a("s_load_dwordx16 s[80:95], s[8:9], s57 glc")
    a("s_lshl_b32 s56, s3, 7"); a(f"s_add_u32 s56, s56, {L_QL}")
    a("v_lshlrev_b32 v4, 2, v1")
    a("v_add_u32 v4, s56, v4")
    a("s_waitcnt lgkmcnt(0)")
    for i in range(32):
        a(f"v_writelane_b32 v5, s{64+i}, {i}")
    a("s_mov_b64 s[58:59], exec")
    a("s_mov_b32 exec_lo, -1"); a("s_mov_b32 exec_hi, 0")
    a("ds_write_b32 v4, v5")
    a("s_mov_b64 exec, s[58:59]")
    a("v_and_b32 v7, 3, v2")
    a("v_lshlrev_b32 v7, 8, v7")
    a("v_lshl_add_u32 v7, v3, 4, v7")
    a("s_waitcnt lgkmcnt(0)")
    a("s_barrier")
    for t in range(4):
        a(f"ds_read_b128 v[{vQ+4*t}:{vQ+4*t+3}], v7 offset:{L_QL + 64*t}")
    a("s_cmp_lg_u32 s3, 0")
    a("s_cbranch_scc1 L_w0pf")
    for n in range(NSLOT): issue(n)
    a("L_w0pf:")
    a("s_cmp_ge_u32 s11, 30"); a("s_cbranch_scc1 L_dma_done")
    if os.environ.get("NODMA"): a("s_branch L_dma_done")
    a("s_cmp_ge_u32 s11, 16"); a("s_cbranch_scc1 L_dma_f")
    a("v_lshlrev_b32 v4, 15, v3")
    a("v_bfe_u32 v5, v1, 2, 2")
    a("v_lshl_add_u32 v4, v5, 13, v4")
    a("v_and_b32 v5, 3, v1")
    a("v_lshl_add_u32 v4, v5, 4, v4")
    a("s_lshl_b32 s56, s10, 9"); a("s_lshr_b32 s57, s3, 1"); a("s_lshl_b32 s57, s57, 7"); a("s_add_u32 s56, s56, s57")
    a("s_and_b32 s57, s3, 1"); a("s_lshl_b32 s57, s57, 2"); a("s_add_u32 s56, s56, s57")
    a("s_lshl_b32 s56, s56, 10"); a("s_lshl_b32 s57, s11, 6"); a("s_add_u32 s56, s56, s57")
    a("s_lshl_b32 s57, s3, 12"); a(f"s_add_u32 s57, s57, {L_W1}")
    for c in range(4):
        a("s_mov_b32 m0, s57")
        if "o" in DMA: a(f"buffer_load_dwordx4 v4, s[{sW1}:{sW1+3}], s56 offen{DNT} lds")
        if c < 3:
            a("s_add_u32 s56, s56, 1024"); a("s_add_u32 s57, s57, 1024")
    a("s_branch L_dma_done")
    a("L_dma_f:")
    a("v_lshrrev_b32 v4, 1, v1")
    a("s_movk_i32 s56, 3584")
    a("v_mul_lo_u32 v4, v4, s56")
    a("v_and_b32 v5, 1, v1")
    a("v_lshl_add_u32 v4, v5, 4, v4")
    a(f"s_mul_i32 s56, s3, {64*3584}"); a("s_lshl_b32 s57, s15, 5"); a("s_add_u32 s56, s56, s57")
    a("s_lshl_b32 s57, s3, 11"); a(f"s_add_u32 s57, s57, {L_W1}")
    a("s_lshl_b32 s63, s15, 14"); a("s_lshl_b32 s62, s3, 11"); a("s_add_u32 s63, s63, s62")
    a("v_lshlrev_b32 v5, 4, v1")
    for c in range(2):
        a("s_mov_b32 m0, s57")
        if "g" in DMA: a(f"buffer_load_dwordx4 v4, s[{sW1}:{sW1+3}], s56 offen{DNT} lds")
        a("s_add_u32 s62, s57, 16384")
        a("s_mov_b32 m0, s62")
        if "g" in DMA: a(f"buffer_load_dwordx4 v4, s[{sW2}:{sW2+3}], s56 offen{DNT} lds")
        a("s_add_u32 s62, s57, 32768")
        a("s_mov_b32 m0, s62")
        if "d" in DMA: a(f"buffer_load_dwordx4 v5, s[{sW3}:{sW3+3}], s63 offen{DNT} lds")
        if c == 0:
            a(f"s_add_u32 s56, s56, {32*3584}"); a("s_add_u32 s57, s57, 1024"); a("s_add_u32 s63, s63, 1024")
    a("L_dma_done:")
    a("s_waitcnt lgkmcnt(0)")
    stamp(a)

    for n in range(16):
        inflight_after = min(16, n + NSLOT) - (n + 1)
        if BAR and n > 0 and n % BAR == 0: a("s_barrier")
        a(f"s_waitcnt vmcnt({8*inflight_after})")
        slot = vB + 32*(n % NSLOT)
        if n < 8:
            for tb in range(2):
                d = vS + 8*n + 4*tb
                for t in range(4):
                    r = slot + 16*tb + 4*t
                    c = "0" if t == 0 else f"v[{d}:{d+3}]"
                    a(f"v_mfma_f32_16x16x32_bf16 v[{d}:{d+3}], v[{r}:{r+3}], v[{vQ+4*t}:{vQ+4*t+3}], {c}")
            if n + NSLOT < 16: issue(n + NSLOT)
            if n == 7:
                stamp(a)
                a("s_cmp_lg_u32 s3, 0"); a("s_cbranch_scc1 L_nocnt")
                a("s_cmp_lt_u32 s11, 16"); a("s_cbranch_scc1 L_nocnt")
                load_counters(a)
                a("L_nocnt:")
                for p in range(32):
                    s0, s1 = vS + 2*p, vS + 2*p + 1
                    a(f"v_cvt_pk_bf16_f32 v{vT}, v{s0}, v{s1}")
                    a(f"v_lshlrev_b32 v{s0}, 16, v{vT}")
                    a(f"v_and_b32 v{s1}, 0xffff0000, v{vT}")
                    a(f"v_mul_f32 v{s0}, s{sSC}, v{s0}")
                    a(f"v_mul_f32 v{s1}, s{sSC}, v{s1}")
                    a(f"v_cvt_pk_bf16_f32 v{vT}, v{s0}, v{s1}")
                    a(f"v_lshlrev_b32 v{s0}, 16, v{vT}")
                    a(f"v_and_b32 v{s1}, 0xffff0000, v{vT}")
                    if p == 0:
                        a(f"v_max_f32 v{vM}, v{s0}, v{s1}")
                    else:
                        a(f"v_max3_f32 v{vM}, v{s0}, v{s1}, v{vM}")
                a(f"v_mov_b32 v{vM+1}, v{vM}")
                a(f"v_permlane16_swap_b32 v{vM}, v{vM+1}")
                a(f"v_max_f32 v{vM}, v{vM}, v{vM+1}")
                a(f"v_mov_b32 v{vM+1}, v{vM}")
                a(f"v_permlane32_swap_b32 v{vM}, v{vM+1}")
                a(f"v_max_f32 v{vM}, v{vM}, v{vM+1}")
                a(f"v_mul_f32 v{vM+1}, s{sL2}, v{vM}")
                a(f"v_mov_b32 v{vM+2}, 0")
                for i in range(64):
                    s0 = vS + i
                    a(f"v_fma_f32 v{s0}, v{s0}, s{sL2}, -v{vM+1}")
                    a(f"v_exp_f32 v{s0}, v{s0}")
                    a(f"v_add_f32 v{vM+2}, v{vM+2}, v{s0}")
                for st in range(8):
                    for p in range(4):
                        a(f"v_cvt_pk_bf16_f32 v{vS+8*st+p}, v{vS+8*st+2*p}, v{vS+8*st+2*p+1}")
        else:
            st = n - 8
            pb = vS + 8*st
            for c in range(4):
                for hl in range(2):
                    e = 2*c + hl
                    tt = vT + 4*(e % 4)
                    for p in range(4):
                        a(f"v_perm_b32 v{tt+p}, v{slot+4*(2*p+1)+c}, v{slot+4*(2*p)+c}, s{sPL+hl}")
                    acc = vS + 8*e + 4
                    cc = "0" if st == 0 else f"v[{acc}:{acc+3}]"
                    a(f"v_mfma_f32_16x16x32_bf16 v[{acc}:{acc+3}], v[{tt}:{tt+3}], v[{pb}:{pb+3}], {cc}")
            if n + NSLOT < 16: issue(n + NSLOT)
    stamp(a)
    a(f"v_mov_b32 v{vM+1}, v{vM+2}")
    a(f"v_permlane16_swap_b32 v{vM+2}, v{vM+1}")
    a(f"v_add_f32 v{vM+2}, v{vM+2}, v{vM+1}")
    a(f"v_mov_b32 v{vM+1}, v{vM+2}")
    a(f"v_permlane32_swap_b32 v{vM+2}, v{vM+1}")
    a(f"v_add_f32 v{vM+1}, v{vM+2}, v{vM+1}")
    a("s_lshl_b32 s56, s3, 11")
    a("v_lshlrev_b32 v6, 9, v2")
    a("v_lshl_add_u32 v6, v3, 4, v6")
    a("v_add_u32 v6, s56, v6")
    a("s_lshl_b32 s57, s3, 3")
    a("v_lshlrev_b32 v7, 6, v2")
    a("v_add_u32 v7, s57, v7")
    a("v_cmp_gt_u32 vcc, 4, v2")
    a("s_and_saveexec_b64 s[58:59], vcc")
    for e in range(8):
        acc = vS + 8*e + 4
        a(f"ds_write_b128 v6, v[{acc}:{acc+3}] offset:{L_O + e*64}")
    a(f"ds_write_b64 v7, v[{vM}:{vM+1}] offset:{L_ML}")
    a("s_mov_b64 exec, s[58:59]")
    a("s_cmp_lg_u32 s3, 0"); a("s_cbranch_scc1 L_cnt_done")
    a("s_cmp_lt_u32 s11, 16"); a("s_cbranch_scc1 L_cnt_done")
    a("s_mov_b32 s62, 0")
    a("L_cnt:")
    a("s_waitcnt lgkmcnt(0)")
    a("s_and_b32 s56, s64, s65")
    a("s_or_b32 s57, s64, s65")
    for k in range(2, 8):
        a(f"s_and_b32 s56, s56, s{64+k}")
        a(f"s_or_b32 s57, s57, s{64+k}")
    a("s_cmp_lg_u32 s56, 32")
    a("s_cbranch_scc1 L_cnt_retry")
    a("s_cmp_eq_u32 s57, 32")
    a("s_cbranch_scc1 L_cnt_done")
    a("L_cnt_retry:")
    a("s_sleep 8")
    load_counters(a)
    a("s_add_u32 s62, s62, 1")
    a(f"s_cmp_lt_u32 s62, {SPIN}")
    a("s_cbranch_scc1 L_cnt")
    a("L_cnt_done:")
    a("s_waitcnt lgkmcnt(0)")
    a("s_barrier")
    a("s_cmp_ge_u32 s3, 2")
    a("s_cbranch_scc1 L_role")
    a("v_lshrrev_b32 v6, 5, v0")
    a("v_lshlrev_b32 v8, 6, v6")
    for i in range(4):
        a(f"ds_read_b128 v[{24+4*i}:{24+4*i+3}], v8 offset:{L_ML + 16*i}")
    a("v_lshlrev_b32 v9, 4, v0")
    for w in range(8):
        a(f"ds_read_b128 v[{40+4*w}:{43+4*w}], v9 offset:{L_O + w*2048}")
    a("s_waitcnt lgkmcnt(8)")
    a("v_max_f32 v10, v24, v26")
    for w in range(2, 8):
        a(f"v_max_f32 v10, v10, v{24+2*w}")
    a("v_mov_b32 v11, 0")
    for w in range(8):
        a(f"v_sub_f32 v{24+2*w}, v{24+2*w}, v10")
        a(f"v_mul_f32 v{24+2*w}, s{sL2}, v{24+2*w}")
        a(f"v_exp_f32 v{24+2*w}, v{24+2*w}")
        a(f"v_fmac_f32 v11, v{24+2*w}, v{25+2*w}")
    a("s_waitcnt lgkmcnt(0)")
    for c in range(4):
        a(f"v_mul_f32 v{12+c}, v24, v{40+c}")
    for w in range(1, 8):
        for c in range(4):
            a(f"v_fmac_f32 v{12+c}, v{24+2*w}, v{40+4*w+c}")
    for r in (10, 11, 12, 13, 14, 15):
        a(f"v_min_u32 v{r}, -2, v{r}")
    a("s_lshl_b32 s56, s14, 11"); a(f"s_add_u32 s56, s56, {WS_PO}")
    a(f"buffer_store_dwordx4 v[12:15], v9, s[{sWS}:{sWS+3}], s56 offen sc1")
    a("s_lshl_b32 s56, s14, 5"); a(f"s_add_u32 s56, s56, {WS_ML}")
    a("v_lshlrev_b32 v8, 3, v6")
    a("v_and_b32 v7, 31, v0")
    a("v_cmp_eq_u32 vcc, 0, v7")
    a("s_and_saveexec_b64 s[58:59], vcc")
    a(f"buffer_store_dwordx2 v[10:11], v8, s[{sWS}:{sWS+3}], s56 offen sc1")
    a("s_mov_b64 exec, s[58:59]")
    a("L_role:")
    stamp(a)
    a("s_cmp_ge_u32 s11, 30"); a("s_cbranch_scc1 L_Z")
    a("s_cmp_ge_u32 s11, 16"); a("s_cbranch_scc1 L_F")

    a("v_lshrrev_b32 v6, 7, v0")
    a("v_and_b32 v7, 127, v0")
    a("v_lshlrev_b32 v16, 14, v6")
    a("v_lshl_add_u32 v16, v7, 4, v16")
    a("v_lshlrev_b32 v17, 8, v6")
    a("v_lshrrev_b32 v18, 5, v7")
    a("v_lshl_add_u32 v17, v18, 3, v17")
    a("s_lshl_b32 s63, s10, 10"); a(f"s_add_u32 s63, s63, {WS_ML}")
    gemv_addr(a, 76, 77, L_W1, L_XN, rowsh=6)
    a("s_mov_b32 s62, 0")
    a("L_o1:")
    for s in range(8):
        a(f"buffer_load_dwordx2 v[{20+2*s}:{21+2*s}], v17, s[{sWS}:{sWS+3}], s63 offen offset:{32*s} sc1")
    a("s_waitcnt vmcnt(0)")
    sent_check(a, range(20, 36), 10)
    poll_tail(a, "L_o1")
    a("s_mov_b32 s62, 0")
    a("L_o2:")
    a("s_lshl_b32 s63, s10, 16"); a(f"s_add_u32 s63, s63, {WS_PO}")
    for s in range(8):
        if s % 2 == 0 and s > 0:
            a("s_add_u32 s63, s63, 4096")
        a(f"buffer_load_dwordx4 v[{36+4*s}:{39+4*s}], v16, s[{sWS}:{sWS+3}], s63 offen offset:{2048*(s%2)} sc1")
    a("s_waitcnt vmcnt(0)")
    sent_check(a, range(36, 68), 10)
    poll_tail(a, "L_o2")
    stamp(a)
    a("v_max_f32 v10, v20, v22")
    for s in range(2, 8):
        a(f"v_max_f32 v10, v10, v{20+2*s}")
    a("v_mov_b32 v11, 0")
    for s in range(8):
        a(f"v_sub_f32 v{20+2*s}, v{20+2*s}, v10")
        a(f"v_mul_f32 v{20+2*s}, s{sL2}, v{20+2*s}")
        a(f"v_exp_f32 v{20+2*s}, v{20+2*s}")
        a(f"v_fmac_f32 v11, v{20+2*s}, v{21+2*s}")
    for c in range(4):
        a(f"v_mul_f32 v{12+c}, v20, v{36+c}")
    for s in range(1, 8):
        for c in range(4):
            a(f"v_fmac_f32 v{12+c}, v{20+2*s}, v{36+4*s+c}")
    a("v_rcp_f32 v10, v11")
    for c in range(4):
        a(f"v_mul_f32 v18, v{12+c}, v10")
        a(f"v_fma_f32 v19, -v18, v11, v{12+c}")
        a(f"v_fma_f32 v{12+c}, v19, v10, v18")
    a("v_cvt_pk_bf16_f32 v12, v12, v13")
    a("v_cvt_pk_bf16_f32 v13, v14, v15")
    a("v_lshlrev_b32 v10, 3, v0")
    a(f"ds_write_b64 v10, v[12:13] offset:{L_XN}")
    a("s_waitcnt lgkmcnt(0)")
    a("s_barrier")
    gemv_wave(a, 36, 76, 77, 40, woff=0, rowb=64)
    gemv_wave(a, 56, 76, 77, 60, woff=32, rowb=64)
    a("s_lshl_b32 s56, s3, 9"); a(f"s_add_u32 s56, s56, {L_RED}")
    a("v_lshlrev_b32 v4, 7, v2")
    a("v_lshl_add_u32 v4, v3, 4, v4")
    a("v_add_u32 v4, s56, v4")
    a("v_cmp_gt_u32 vcc, 4, v2")
    a("s_and_saveexec_b64 s[58:59], vcc")
    a("ds_write_b128 v4, v[36:39]")
    a("ds_write_b128 v4, v[56:59] offset:64")
    a("s_mov_b64 exec, s[58:59]")
    a("s_waitcnt lgkmcnt(0)")
    a("s_barrier")
    a("s_cmp_lg_u32 s3, 0")
    a("s_cbranch_scc1 L_fin")
    a("v_and_b32 v5, 31, v1")
    a("v_lshlrev_b32 v4, 4, v5")
    for w in range(8):
        a(f"ds_read_b128 v[{8+4*w}:{11+4*w}], v4 offset:{L_RED + w*512}")
    a("v_lshrrev_b32 v4, 3, v5"); a("v_lshlrev_b32 v4, 11, v4")
    a("v_and_b32 v5, 7, v5"); a("v_lshl_add_u32 v4, v5, 4, v4")
    a("s_lshl_b32 s56, s10, 13"); a("s_lshl_b32 s57, s11, 7"); a("s_add_u32 s56, s56, s57"); a(f"s_add_u32 s56, s56, {WS_AO}")
    a("s_waitcnt lgkmcnt(0)")
    for w in range(1, 8):
        for c in range(4):
            a(f"v_add_f32 v{8+c}, v{8+c}, v{8+4*w+c}")
    for c in range(4):
        a(f"v_min_u32 v{8+c}, -2, v{8+c}")
    a("s_mov_b32 exec_lo, -1"); a("s_mov_b32 exec_hi, 0")
    a(f"buffer_store_dwordx4 v[8:11], v4, s[{sWS}:{sWS+3}], s56 offen sc1")
    a("s_mov_b64 exec, -1")
    a("s_branch L_fin")

    a("L_F:")
    a("v_lshlrev_b32 v16, 4, v0")
    a("v_lshlrev_b32 v17, 3, v0")
    a(f"buffer_load_dwordx2 v[18:19], v17, s[{sX}:{sX+3}], 0 offen")
    gemv_addr(a, 76, 77, L_W1, L_XN)
    a("s_and_b32 s63, s15, 7"); a("s_lshl_b32 s63, s63, 13"); a(f"s_add_u32 s63, s63, {WS_AO}")
    a("s_mov_b32 s62, 0")
    a("L_f1:")
    a(f"buffer_load_dwordx4 v[36:39], v16, s[{sWS}:{sWS+3}], s63 offen sc1")
    a("s_waitcnt vmcnt(0)")
    sent_check(a, range(36, 40), 10)
    poll_tail(a, "L_f1")
    a("s_mov_b32 s62, 0")
    a("L_f2:")
    a(f"s_mov_b32 s63, {WS_AO}")
    for k in range(8):
        a(f"buffer_load_dwordx4 v[{36+4*k}:{39+4*k}], v16, s[{sWS}:{sWS+3}], s63 offen sc1")
        if k < 7: a("s_add_u32 s63, s63, 8192")
    a("s_waitcnt vmcnt(0)")
    sent_check(a, range(36, 68), 10)
    poll_tail(a, "L_f2")
    stamp(a)
    for k in range(1, 8):
        for c in range(4):
            a(f"v_add_f32 v{36+c}, v{36+c}, v{36+4*k+c}")
    for c in range(4): rbf(a, 36+c)
    a("v_lshlrev_b32 v40, 16, v18"); a("v_and_b32 v41, 0xffff0000, v18")
    a("v_lshlrev_b32 v42, 16, v19"); a("v_and_b32 v43, 0xffff0000, v19")
    for c in range(4): a(f"v_add_f32 v{36+c}, v{36+c}, v{40+c}")
    a("v_cvt_pk_bf16_f32 v36, v36, v37")
    a("v_cvt_pk_bf16_f32 v37, v38, v39")
    a(f"ds_write_b64 v17, v[36:37] offset:{L_HB}")
    a("s_waitcnt lgkmcnt(0)")
    a("s_barrier")
    a("s_cmp_ge_u32 s3, 4")
    a("s_cbranch_scc1 L_f_skip")
    a(f"ds_read_b128 v[16:19], v16 offset:{L_HB}")
    a("v_lshlrev_b32 v6, 4, v0")
    a("s_waitcnt lgkmcnt(0)")
    layernorm(a, 16, 20, 28)
    a(f"ds_write_b128 v6, v[16:19] offset:{L_XN}")
    a("L_f_skip:")
    a("s_waitcnt lgkmcnt(0)")
    a("s_barrier")
    gemv_wave(a, 36, 76, 77, 40)
    gemv_wave(a, 56, 76, 77, 60, woff=16384)
    a("s_lshl_b32 s56, s3, 8"); a(f"s_add_u32 s56, s56, {L_RED}")
    a("v_lshlrev_b32 v4, 6, v2")
    a("v_lshl_add_u32 v4, v3, 4, v4")
    a("v_add_u32 v4, s56, v4")
    a("v_cmp_gt_u32 vcc, 4, v2")
    a("s_and_saveexec_b64 s[58:59], vcc")
    a("ds_write_b128 v4, v[36:39]")
    a("ds_write_b128 v4, v[56:59] offset:2048")
    a("s_mov_b64 exec, s[58:59]")
    a("s_waitcnt lgkmcnt(0)")
    a("s_barrier")
    a("s_cmp_ge_u32 s3, 1")
    a("s_cbranch_scc1 L_f_skip2")
    a("v_lshlrev_b32 v4, 2, v1")
    for w in range(8):
        a(f"ds_read_b32 v{8+w}, v4 offset:{L_RED + w*256}")
        a(f"ds_read_b32 v{16+w}, v4 offset:{L_RED + 2048 + w*256}")
    a("s_waitcnt lgkmcnt(0)")
    for w in range(1, 8):
        a(f"v_add_f32 v8, v8, v{8+w}")
        a(f"v_add_f32 v16, v16, v{16+w}")
    rbf(a, 8); rbf(a, 16)
    a("v_mul_f32 v9, v8, v8")
    a("v_mul_f32 v9, 0x3d372713, v9")
    a("v_fma_f32 v9, v9, v8, v8")
    a("v_mul_f32 v9, 0xc0135761, v9")
    a("v_exp_f32 v9, v9")
    a("v_add_f32 v9, 1.0, v9")
    a("v_rcp_f32 v10, v9")
    a("v_mul_f32 v11, v8, v10")
    a("v_fma_f32 v12, -v11, v9, v8")
    a("v_fma_f32 v12, v12, v10, v11")
    a("v_cmp_gt_f32 vcc, 0x7f000000, v9")
    a("v_cndmask_b32 v11, v11, v12, vcc")
    rbf(a, 11)
    a("v_mul_f32 v11, v11, v16")
    a("v_cvt_pk_bf16_f32 v11, v11, v11")
    a("v_lshlrev_b32 v4, 1, v1")
    a(f"ds_write_b16 v4, v11 offset:{L_ACT}")
    a("L_f_skip2:")
    a("s_waitcnt lgkmcnt(0)")
    a("s_barrier")
    a("v_and_b32 v5, 3, v2")
    a("v_lshlrev_b32 v4, 5, v5")
    a("v_lshl_add_u32 v4, v3, 3, v4")
    a(f"ds_read_b64 v[8:9], v4 offset:{L_ACT}")
    a("v_lshrrev_b32 v6, 2, v2")
    a("v_lshl_add_u32 v6, v3, 2, v6")
    a("v_lshlrev_b32 v6, 10, v6")
    a("v_lshl_add_u32 v6, v5, 3, v6")
    a("s_lshl_b32 s56, s3, 7"); a(f"s_add_u32 s56, s56, {L_W3}")
    a("v_add_u32 v6, s56, v6")
    for m in range(4):
        a(f"ds_read_b64_tr_b16 v[{10+2*m}:{11+2*m}], v6 offset:{32*m}")
    a("s_waitcnt lgkmcnt(0)")
    for m in range(4):
        a(f"v_mfma_f32_16x16x16_bf16 v[{20+4*m}:{23+4*m}], v[{10+2*m}:{11+2*m}], v[8:9], 0")
    a("v_lshlrev_b32 v4, 11, v2")
    a("v_lshl_add_u32 v4, v3, 4, v4")
    a("s_lshl_b32 s56, s15, 13"); a("s_lshl_b32 s57, s3, 8"); a("s_add_u32 s56, s56, s57"); a(f"s_add_u32 s56, s56, {WS_DP}")
    for r in range(20, 36):
        a(f"v_min_u32 v{r}, -2, v{r}")
    a("v_cmp_gt_u32 vcc, 4, v2")
    a("s_and_saveexec_b64 s[58:59], vcc")
    for m in range(4):
        a(f"buffer_store_dwordx4 v[{20+4*m}:{23+4*m}], v4, s[{sWS}:{sWS+3}], s56 offen offset:{64*m} sc1")
    a("s_mov_b64 exec, s[58:59]")
    a("s_branch L_fin")

    a("L_Z:")
    a("v_and_b32 v4, 31, v0")
    a("v_lshrrev_b32 v5, 5, v0")
    a("v_lshlrev_b32 v16, 13, v5")
    a("v_lshl_add_u32 v16, v4, 4, v16")
    a("v_lshlrev_b32 v17, 4, v4")
    a("v_lshlrev_b32 v18, 3, v4")
    a("s_lshl_b32 s57, s15, 8")
    a(f"buffer_load_dwordx2 v[6:7], v18, s[{sX}:{sX+3}], s57 offen")
    a("s_mov_b32 s62, 0")
    a("L_z1:")
    a("s_lshl_b32 s63, s15, 9"); a(f"s_add_u32 s63, s63, {WS_AO}")
    for k in range(8):
        a(f"buffer_load_dwordx4 v[{36+4*k}:{39+4*k}], v17, s[{sWS}:{sWS+3}], s63 offen sc1")
        if k < 7: a("s_add_u32 s63, s63, 8192")
    a("s_waitcnt vmcnt(0)")
    sent_check(a, range(36, 68), 10)
    poll_tail(a, "L_z1", sleep=4)
    for k in range(1, 8):
        for c in range(4):
            a(f"v_add_f32 v{36+c}, v{36+c}, v{36+4*k+c}")
    for c in range(4): rbf(a, 36+c)
    a("v_lshlrev_b32 v40, 16, v6"); a("v_and_b32 v41, 0xffff0000, v6")
    a("v_lshlrev_b32 v42, 16, v7"); a("v_and_b32 v43, 0xffff0000, v7")
    for c in range(4): a(f"v_add_f32 v{72+c}, v{36+c}, v{40+c}")
    for c in range(4): rbf(a, 72+c)
    stamp(a)
    a("s_mov_b32 s62, 0")
    a("L_z2:")
    a("s_lshl_b32 s63, s15, 9"); a(f"s_add_u32 s63, s63, {WS_DP}")
    for k in range(7):
        a(f"buffer_load_dwordx4 v[{36+4*k}:{39+4*k}], v16, s[{sWS}:{sWS+3}], s63 offen sc1")
        if k < 6: a(f"s_add_u32 s63, s63, {16*8192}")
    a("s_waitcnt vmcnt(0)")
    sent_check(a, range(36, 64), 10)
    poll_tail(a, "L_z2")
    stamp(a)
    for k in range(1, 7):
        for c in range(4):
            a(f"v_add_f32 v{36+c}, v{36+c}, v{36+4*k+c}")
    a("v_lshlrev_b32 v6, 4, v0")
    a(f"ds_write_b128 v6, v[36:39] offset:{L_FIN}")
    a("s_waitcnt lgkmcnt(0)")
    a("s_barrier")
    a("s_cmp_lg_u32 s3, 0")
    a("s_cbranch_scc1 L_fin")
    for p in range(16):
        a(f"ds_read_b128 v[{80+4*p}:{83+4*p}], v17 offset:{L_FIN + 512*p}")
    a("s_waitcnt lgkmcnt(0)")
    for p in range(1, 16):
        for c in range(4):
            a(f"v_add_f32 v{80+c}, v{80+c}, v{80+4*p+c}")
    for c in range(4):
        rbf(a, 80+c)
        a(f"v_add_f32 v{80+c}, v{80+c}, v{72+c}")
    a("v_cvt_pk_bf16_f32 v80, v80, v81")
    a("v_cvt_pk_bf16_f32 v81, v82, v83")
    a("s_lshl_b32 s57, s15, 8")
    a("s_mov_b32 exec_lo, -1"); a("s_mov_b32 exec_hi, 0")
    a(f"buffer_store_dwordx2 v[80:81], v18, s[{sOUT}:{sOUT+3}], s57 offen")
    a("s_mov_b64 exec, -1")
    a("L_fin:")
    if STAMP:
        stamp_n[0] = 15
        stamp(a)
        a("s_cmp_lg_u32 s3, 0")
        a("s_cbranch_scc1 L_end")
        a("v_lshlrev_b32 v4, 2, v1")
        a("s_lshl_b32 s56, s2, 6"); a(f"s_add_u32 s56, s56, {WS_TS}")
        a("s_mov_b64 exec, 0xffff")
        a(f"buffer_store_dword v{vST}, v4, s[{sWS}:{sWS+3}], s56 offen")
    a("L_end:")
    a("s_endpgm")
    nv = NV + (1 if STAMP else 0)
    acc = (nv + 3) // 4 * 4
    desc = f""".section .rodata,"a"
.p2align 6
.amdhsa_kernel {name}
  .amdhsa_next_free_vgpr {nv}
  .amdhsa_next_free_sgpr 102
  .amdhsa_accum_offset {acc}
  .amdhsa_group_segment_fixed_size 0
  .amdhsa_kernarg_size 96
  .amdhsa_user_sgpr_count 2
  .amdhsa_user_sgpr_kernarg_segment_ptr 1
  .amdhsa_system_sgpr_workgroup_id_x 1
.end_amdhsa_kernel
"""
    body = a.finalize()
    out = HEADER + f"; @launch grid=(256,1,1) block=(512,1,1) lds={L_END}\n" + '.amdgcn_target "amdgcn-amd-amdhsa--gfx950"\n' + body + desc
    path = sys.argv[1] if len(sys.argv) > 1 else "k3.s"
    open(path, "w").write(out)
    print("wrote", path, len(out))

if __name__ == "__main__":
    main()
```

```python
import sys, os
from asmlib import Asm

NAME = "sequential_preLN__gqa_block_cached__geglu_ffn__decode"
HEADER = open("cdna_kernels/%s.s.ref" % NAME).read().split("; Override launch")[0]

WS_Q    = 0
WS_MB   = 0x8000
WS_PO   = 0x10000
WS_ML   = 0x90000
WS_AO   = 0xA0000
WS_DP   = 0xC0000
WS_TS   = 0x1A0000
WS_CT   = 0x1A8000
WS_SIZE = 0x1B0000

LOG2E = 0x3fb8aa3b
SCALE = 0x3db504f3
EPS   = 0x3727c5ac

NSLOT = int(os.environ.get("NSLOT", 4))
NT = " nt" if os.environ.get("NT", "1") == "1" else ""
NTV = " nt" if os.environ.get("NTV", "0") == "1" else ""
STAMP = os.environ.get("STAMP", "0") == "1"
SPIN = 1 << 16
BAR = int(os.environ.get("BAR", 0))
DMA = os.environ.get("DMA", "ogd")
DNT = " nt" if os.environ.get("DNT", "1") == "1" else ""

L_O, L_XN, P_RED, L_QS, L_QL, L_ML, L_FLG, L_ACT = 0, 8192, 12288, 14336, 14464, 15488, 15744, 16128
L_RED, L_HB, L_FIN = 0, 4096, 0
L_FREE = L_FLG + 64
L_W1 = 16384
L_W2, L_W3 = L_W1 + 16384, L_W1 + 32768
L_QW = L_W3
L_RING = 65536
NSL = 6
L_END = L_RING + NSL*16384
S0 = int(os.environ.get("S0", 16))
NOCOMP = os.environ.get("NOCOMP") == "1"
NOSW = os.environ.get("NOSW") == "1"
ROT = int(os.environ.get("ROT", 16))
CPF = os.environ.get("CPF", "1") == "1"
THR = int(os.environ.get("THR", 14))
WTHR = int(os.environ.get("WTHR", 28))
HALF = os.environ.get("HALF", "0") == "1"
LAG = int(os.environ.get("LAG", 3))
LA = int(os.environ.get("LA", 8))
CMIN = int(os.environ.get("CMIN", 2))
QS = os.environ.get("QS", "1") == "1"
NPRE = int(os.environ.get("NPRE", 6))
L_PROG, L_CLM = L_FLG + 88, L_FLG + 128
L_XCNT, L_QF, L_QCNT = L_FLG + 48, L_FLG + 52, L_FLG + 56
DYN = os.environ.get("DYN", "1") == "1"
XMAP = os.environ.get("XMAP", "1") == "1"

sK, sV, sWS, sX, sW1, sW2, sW3, sOUT, sDBG, sWQ = 16, 20, 24, 28, 32, 36, 40, 44, 48, 52
sSC, sL2 = 98, 99
sN, sBASE, sC = 96, 97, 6

vQ = 8; vA = 24; vS = 56; vP = 64; vKD = 68; vVD = 100; vKA = 132; vVA = 136; vM = 144; vDK = 152; vDV = 156; vT = 158; vF = 160
NV = 164
vST = NV

def srd(a, d, ptr, nbytes):
    a(f"s_mov_b32 s{d}, s{ptr}")
    a(f"s_and_b32 s{d+1}, s{ptr+1}, 0xffff")
    a(f"s_mov_b32 s{d+2}, {nbytes}")
    a(f"s_mov_b32 s{d+3}, 0x00020000")

def wave_allreduce(a, v, t, op):
    for ctl in ("quad_perm:[1,0,3,2]", "quad_perm:[2,3,0,1]", "row_half_mirror", "row_mirror"):
        a(f"v_{op}_f32_dpp v{v}, v{v}, v{v} {ctl} row_mask:0xf bank_mask:0xf")
    a(f"v_mov_b32 v{t}, v{v}")
    a(f"v_permlane16_swap_b32 v{v}, v{t}")
    a(f"v_{op}_f32 v{v}, v{v}, v{t}")
    a(f"v_mov_b32 v{t}, v{v}")
    a(f"v_permlane32_swap_b32 v{v}, v{t}")
    a(f"v_{op}_f32 v{v}, v{v}, v{t}")

def rbf(a, v):
    a(f"v_cvt_pk_bf16_f32 v{v}, v{v}, v{v}")
    a(f"v_lshlrev_b32 v{v}, 16, v{v}")

def layernorm(a, src, f, t):
    for i in range(4):
        a(f"v_lshlrev_b32 v{f+2*i}, 16, v{src+i}")
        a(f"v_and_b32 v{f+2*i+1}, 0xffff0000, v{src+i}")
    a(f"v_add_f32 v{t}, v{f}, v{f+1}")
    for i in range(2, 8):
        a(f"v_add_f32 v{t}, v{t}, v{f+i}")
    wave_allreduce(a, t, t+1, "add")
    a(f"v_mul_f32 v{t}, 0x3b000000, v{t}")
    a(f"v_sub_f32 v{t+1}, v{f}, v{t}")
    a(f"v_mul_f32 v{t+2}, v{t+1}, v{t+1}")
    for i in range(1, 8):
        a(f"v_sub_f32 v{t+1}, v{f+i}, v{t}")
        a(f"v_fmac_f32 v{t+2}, v{t+1}, v{t+1}")
    wave_allreduce(a, t+2, t+1, "add")
    a(f"v_mul_f32 v{t+2}, 0x3b000000, v{t+2}")
    rbf(a, t)
    rbf(a, t+2)
    a(f"v_add_f32 v{t+2}, {EPS:#x}, v{t+2}")
    rbf(a, t+2)
    a(f"v_sqrt_f32 v{t+2}, v{t+2}")
    rbf(a, t+2)
    a(f"v_rcp_f32 v{t+3}, v{t+2}")
    for i in range(8):
        a(f"v_sub_f32 v{f+i}, v{f+i}, v{t}")
        rbf(a, f+i)
        a(f"v_mul_f32 v{t+4}, v{f+i}, v{t+3}")
        a(f"v_fma_f32 v{t+5}, -v{t+4}, v{t+2}, v{f+i}")
        a(f"v_fma_f32 v{f+i}, v{t+5}, v{t+3}, v{t+4}")
    for i in range(4):
        a(f"v_cvt_pk_bf16_f32 v{src+i}, v{f+2*i}, v{f+2*i+1}")

def gemv_wave(a, vD, vWaddr, vAaddr, vt, woff=0, rowb=32):
    for ks in range(2):
        a(f"ds_read_b64_tr_b16 v[{vt+8*ks}:{vt+8*ks+1}], v{vWaddr} offset:{woff + ks*32*rowb}")
        a(f"ds_read_b64_tr_b16 v[{vt+8*ks+2}:{vt+8*ks+3}], v{vWaddr} offset:{woff + ks*32*rowb + 4*rowb}")
        a(f"ds_read_b128 v[{vt+8*ks+4}:{vt+8*ks+7}], v{vAaddr} offset:{ks*64}")
    a("s_waitcnt lgkmcnt(0)")
    a(f"v_mfma_f32_16x16x32_bf16 v[{vD}:{vD+3}], v[{vt}:{vt+3}], v[{vt+4}:{vt+7}], 0")
    a(f"v_mfma_f32_16x16x32_bf16 v[{vD}:{vD+3}], v[{vt+8}:{vt+11}], v[{vt+12}:{vt+15}], v[{vD}:{vD+3}]")

def gemv_addr(a, vW, vA, wbase, abase, rowsh=5):
    a(f"v_lshrrev_b32 v4, 2, v2")
    a(f"v_lshl_add_u32 v4, v3, 3, v4")
    a(f"v_lshlrev_b32 v4, {rowsh}, v4")
    a(f"v_and_b32 v5, 3, v2")
    a(f"v_lshl_add_u32 v4, v5, 3, v4")
    a(f"s_lshl_b32 s56, s3, {6+rowsh}")
    a(f"s_add_u32 s56, s56, {wbase}")
    a(f"v_add_u32 v{vW}, s56, v4")
    a(f"v_lshlrev_b32 v4, 10, v5")
    a(f"v_lshl_add_u32 v4, v3, 4, v4")
    a(f"s_lshl_b32 s56, s3, 7")
    a(f"s_add_u32 s56, s56, {abase}")
    a(f"v_add_u32 v{vA}, s56, v4")

stamp_n = [0]
def stamp(a, n=None):
    if not STAMP: return
    if n is None:
        n = stamp_n[0]; stamp_n[0] += 1
    a("s_memrealtime s[100:101]")
    a("s_waitcnt lgkmcnt(0)")
    a(f"v_writelane_b32 v{vST}, s100, {n}")

def lstamp(a, n):
    if not STAMP: return
    a("s_memrealtime s[100:101]")
    a("s_waitcnt lgkmcnt(0)")
    a(f"v_writelane_b32 v{vST}, s100, {n}")

def sent_check(a, regs, vt):
    regs = list(regs)
    a(f"v_max_u32 v{vt}, v{regs[0]}, v{regs[1]}")
    rest = regs[2:]
    while len(rest) >= 2:
        a(f"v_max3_u32 v{vt}, v{rest[0]}, v{rest[1]}, v{vt}"); rest = rest[2:]
    if rest:
        a(f"v_max_u32 v{vt}, v{rest[0]}, v{vt}")
    a(f"v_cmp_eq_u32 vcc, -1, v{vt}")

def poll_tail(a, lab, sleep=1):
    a("s_cmp_eq_u64 vcc, 0")
    a(f"s_cbranch_scc1 {lab}_done")
    a(f"s_sleep {sleep}")
    a("s_add_u32 s62, s62, 1")
    a(f"s_cmp_lt_u32 s62, {SPIN}")
    a(f"s_cbranch_scc1 {lab}")
    a(f"{lab}_done:")

CSH = int(os.environ.get("CSH", 5))
PRE = int(os.environ.get("PRE", 1))
def load_counters(a):
    if CSH == 2:
        a("s_load_dwordx8 s[64:71], s[4:5], 0 glc")
    else:
        for k in range(8):
            a(f"s_load_dword s{64+k}, s[4:5], {k << CSH} glc")

def main():
    a = Asm()
    name = NAME + "_kernel"
    a.raw(".text"); a.raw(f".globl {name}"); a.raw(".p2align 8"); a.raw(f".type {name},@function"); a.raw(f"{name}:")
    a("s_cmp_ge_u32 s2, 256")
    a("s_cbranch_scc1 L_end")
    a("s_load_dwordx16 s[64:79], s[0:1], 0")
    a("s_load_dwordx8 s[80:87], s[0:1], 64")
    if STAMP:
        a(f"v_mov_b32 v{vST}, 0")
    a("v_and_b32 v1, 63, v0")
    a("v_lshrrev_b32 v2, 6, v0")
    a("v_readfirstlane_b32 s3, v2")
    if CPF:
        a("s_cmp_lg_u32 s3, 3"); a("s_cbranch_scc1 L_nocpf")
        a("s_getpc_b64 s[58:59]")
        a.raw("L_pc0:")
        a("v_lshlrev_b32 v4, 7, v1")
        for i in range(3):
            a(f"v_min_u32 v5, L_end-L_pc0, v4")
            a(f"global_load_dword v{20+i}, v5, s[58:59]")
            a("v_add_u32 v4, 0x2000, v4")
        a("L_nocpf:")
    a("v_and_b32 v2, 15, v1")
    a("v_lshrrev_b32 v3, 4, v1")
    a("s_lshr_b32 s11, s2, 3")
    a("s_and_b32 s12, s11, 3")
    a("s_lshr_b32 s13, s11, 2")
    if XMAP:
        a("s_add_u32 s10, s2, s13"); a("s_and_b32 s10, s10, 7")
        a("s_lshl_b32 s2, s11, 3"); a("s_or_b32 s2, s2, s10")
    else:
        a("s_and_b32 s10, s2, 7")
    a("s_lshl_b32 s7, s12, 3")
    a("s_add_u32 s7, s7, s10")
    a("s_lshl_b32 s7, s7, 22")
    if os.environ.get("MAPMB"):
        a("s_lshl_b32 s7, s11, 22"); a("s_and_b32 s13, s2, 7")
    a(f"s_mov_b32 s{sSC}, {SCALE:#x}"); a(f"s_mov_b32 s{sL2}, {LOG2E:#x}")
    a("s_lshl_b32 s14, s10, 2"); a("s_add_u32 s14, s14, s12"); a("s_lshl_b32 s14, s14, 3"); a("s_add_u32 s14, s14, s13")
    a("s_mul_i32 s15, s10, 14"); a("s_add_u32 s15, s15, s11"); a("s_sub_u32 s15, s15, 16")
    a("s_sub_u32 s56, s11, 30"); a("s_lshl_b32 s56, s56, 3"); a("s_add_u32 s56, s56, s10")
    a("s_cmp_ge_u32 s11, 30"); a("s_cselect_b32 s15, s56, s15")
    a("v_lshlrev_b32 v6, 4, v1")
    a(f"s_sub_u32 s{sC}, s3, 4")
    a(f"s_lshl_b32 s{sBASE}, s{sC}, 14"); a(f"s_add_u32 s{sBASE}, s{sBASE}, {L_RING}")
    a("s_waitcnt lgkmcnt(0)")
    srd(a, sWS, 86, WS_SIZE)
    a("s_cmp_lg_u32 s3, 0")
    a("s_cbranch_scc1 L_nw0")
    a("v_lshrrev_b32 v4, 1, v1")
    a("v_lshlrev_b32 v4, 13, v4")
    a("v_and_b32 v5, 1, v1")
    a("v_lshl_add_u32 v4, v5, 4, v4")
    a("s_lshl_b32 s56, s10, 10"); a("s_lshl_b32 s57, s11, 5"); a("s_add_u32 s56, s56, s57")
    srd(a, sWQ, 70, 512*8192)
    for m in range(16):
        a(f"buffer_load_dwordx4 v[{28+4*m}:{31+4*m}], v4, s[{sWQ}:{sWQ+3}], s56 offen")
        if m < 15 and not os.environ.get("NOWQ"): a(f"s_add_u32 s56, s56, {32*8192}")
    for i in range(4): a(f"v_mov_b32 v{12+i}, -1")
    a("s_lshl_b32 s56, s14, 11"); a(f"s_add_u32 s56, s56, {WS_PO}")
    a(f"buffer_store_dwordx4 v[12:15], v6, s[{sWS}:{sWS+3}], s56 offen sc1")
    a(f"buffer_store_dwordx4 v[12:15], v6, s[{sWS}:{sWS+3}], s56 offen offset:1024 sc1")
    a("v_lshrrev_b32 v4, 3, v1"); a("v_lshlrev_b32 v4, 11, v4")
    a("v_and_b32 v5, 7, v1"); a("v_lshl_add_u32 v4, v5, 4, v4")
    a("s_lshl_b32 s56, s10, 13"); a("s_lshl_b32 s57, s11, 7"); a("s_add_u32 s56, s56, s57"); a(f"s_add_u32 s56, s56, {WS_AO}")
    a("v_add_u32 v4, s56, v4")
    a("s_lshl_b32 s56, s14, 5"); a(f"s_add_u32 s56, s56, {WS_ML - 512}")
    a("v_add_u32 v5, s56, v6")
    a("v_cmp_gt_u32 vcc, 32, v1")
    a("v_cndmask_b32 v4, v5, v4, vcc")
    a("s_lshl_b32 s56, s2, 7"); a(f"s_add_u32 s56, s56, {WS_MB}")
    a("v_mov_b32 v5, s56")
    a("v_cmp_eq_u32 vcc, 34, v1")
    a("v_cndmask_b32 v4, v4, v5, vcc")
    a("s_lshr_b32 s56, s14, 3"); a("s_lshl_b32 s56, s56, 7"); a(f"s_add_u32 s56, s56, {WS_CT}")
    a("v_mov_b32 v5, s56")
    a("v_cmp_eq_u32 vcc, 35, v1")
    a("v_cndmask_b32 v4, v4, v5, vcc")
    a(f"v_mov_b32 v5, {8*S0}")
    a("v_cndmask_b32 v8, v12, v5, vcc")
    for i in range(1, 4): a(f"v_mov_b32 v{8+i}, -1")
    a("s_cmp_eq_u32 s13, 0"); a("s_cselect_b32 s61, 15, 7")
    a("s_cmp_lt_u32 s11, 16"); a("s_cselect_b32 s60, -1, 0")
    a("s_mov_b64 exec, s[60:61]")
    a(f"buffer_store_dwordx4 v[8:11], v4, s[{sWS}:{sWS+3}], 0 offen sc1")
    a("s_mov_b64 exec, -1")
    a("s_lshl_b32 s56, s15, 13"); a(f"s_add_u32 s56, s56, {WS_DP}")
    a("s_mov_b32 s57, 0")
    a("s_cmp_lt_u32 s11, 16"); a(f"s_cselect_b32 s57, {WS_SIZE}, s57"); a("s_cselect_b32 s56, 0, s56")
    a("s_cmp_ge_u32 s11, 30"); a(f"s_cselect_b32 s57, {WS_SIZE}, s57"); a("s_cselect_b32 s56, 0, s56")
    a("v_add_u32 v7, s57, v6")
    for c in range(8):
        if c == 4: a("s_add_u32 s56, s56, 4096")
        a(f"buffer_store_dwordx4 v[12:15], v7, s[{sWS}:{sWS+3}], s56 offen offset:{1024*(c%4)} sc1")
    a("s_branch L_b0")
    a("L_nw0:")
    srd(a, sX, 64, 4096)
    a("s_and_b32 s63, s3, 3"); a("s_lshl_b32 s63, s63, 10")
    a("s_lshr_b32 s56, s3, 2"); a("s_cmp_lg_u32 s56, 1"); a("s_cbranch_scc1 L_nox")
    a(f"buffer_load_dwordx4 v[24:27], v6, s[{sX}:{sX+3}], s63 offen")
    a("L_nox:")
    a("s_cmp_lg_u32 s3, 1"); a("s_cbranch_scc1 L_b0")
    a("v_and_b32 v4, 1, v1")
    a("v_cmp_eq_u32 vcc, 1, v4")
    a("v_cmp_gt_u32 s[58:59], 12, v1")
    a("s_and_b64 vcc, vcc, s[58:59]")
    a("v_mov_b32 v4, 0"); a("v_mov_b32 v5, 0x7fffffff")
    a("v_cndmask_b32 v4, v4, v5, vcc")
    a("v_subrev_u32 v5, 21, v1")
    a("v_cmp_lt_u32 vcc, -6, v5")
    a("v_cndmask_b32 v4, v4, v5, vcc")
    a("v_lshlrev_b32 v5, 2, v1")
    a(f"ds_write_b32 v5, v4 offset:{L_FLG}")
    a("s_waitcnt lgkmcnt(0)")
    a("L_b0:")
    srd(a, sX, 64, 4096)
    a(f"s_add_u32 s{sK}, s66, s7"); a(f"s_addc_u32 s{sK+1}, s67, 0"); a(f"s_and_b32 s{sK+1}, s{sK+1}, 0xffff")
    a(f"s_mov_b32 s{sK+2}, 0x400000"); a(f"s_mov_b32 s{sK+3}, 0x00020000")
    a(f"s_add_u32 s{sV}, s68, s7"); a(f"s_addc_u32 s{sV+1}, s69, 0"); a(f"s_and_b32 s{sV+1}, s{sV+1}, 0xffff")
    a(f"s_mov_b32 s{sV+2}, 0x400000"); a(f"s_mov_b32 s{sV+3}, 0x00020000")
    srd(a, sW1, 72, 4096*1024)
    srd(a, sW2, 78, 512*3584)
    srd(a, sW3, 80, 1792*1024)
    srd(a, sOUT, 82, 4096)
    a("s_mov_b32 s4, s84"); a("s_mov_b32 s5, s85")
    a("s_mov_b32 s8, s86"); a("s_mov_b32 s9, s87")
    a("s_cmp_lt_u32 s11, 16")
    a("s_cbranch_scc1 L_p1")
    srd(a, sW1, 76, 512*3584)
    a("L_p1:")
    a("v_mov_b32 v9, 0")
    stamp(a)
    a("s_barrier")
    a("s_cmp_eq_u32 s3, 8"); a("s_cbranch_scc1 L_loader")
    a("s_cmp_eq_u32 s3, 0"); a("s_cbranch_scc1 L_w0q")
    a("s_cmp_lt_u32 s3, 4"); a("s_cbranch_scc1 L_qwait")

    def lds_wait(tag, off, val, sleep=1):
        a("s_mov_b32 s62, 0")
        a(f"L_lw{tag}:")
        a(f"ds_read_b32 v10, v9 offset:{off}")
        a("s_waitcnt lgkmcnt(0)")
        a("v_readfirstlane_b32 s56, v10")
        a(f"s_cmp_eq_u32 s56, {val}")
        a(f"s_cbranch_scc1 L_lwd{tag}")
        a(f"s_sleep {sleep}")
        a("s_add_u32 s62, s62, 1")
        a(f"s_cmp_lt_u32 s62, {SPIN*16}")
        a(f"s_cbranch_scc1 L_lw{tag}")
        a(f"L_lwd{tag}:")
    def lds_inc(off):
        a("v_mov_b32 v10, 1")
        a("s_mov_b64 exec, 1")
        a(f"ds_add_u32 v9, v10 offset:{off}")
        a("s_mov_b64 exec, -1")

    a("s_waitcnt vmcnt(0)")
    layernorm(a, 24, 28, 36)
    a("v_add_u32 v4, s63, v6")
    a(f"ds_write_b128 v4, v[24:27] offset:{L_XN}")
    lds_inc(L_XCNT)
    a("v_lshrrev_b32 v4, 2, v2")
    a("v_and_b32 v5, 3, v2")
    a("v_lshl_add_u32 v6, v4, 3, v5")
    a("v_lshlrev_b32 v6, 8, v6")
    a("v_xor_b32 v7, v2, v3")
    a("v_lshl_add_u32 v6, v7, 4, v6")
    a(f"v_add_u32 v{vKA}, s{sBASE}, v6")
    for t in range(1, 4):
        a(f"v_xor_b32 v{vKA+t}, {t<<6:#x}, v{vKA}")
    a("v_lshl_add_u32 v6, v3, 3, v4")
    a("v_lshlrev_b32 v6, 8, v6")
    a("v_and_b32 v7, 1, v3")
    a("v_lshl_add_u32 v7, v7, 2, v4")
    a("v_lshl_add_u32 v6, v7, 5, v6")
    a("v_lshl_add_u32 v6, v5, 3, v6")
    a(f"v_add_u32 v{vVA}, s{sBASE}, v6")
    for T in range(1, 8):
        a(f"v_xor_b32 v{vVA+T}, {T<<5:#x}, v{vVA}")
    for r in range(32): a(f"v_mov_b32 v{vA+r}, 0")
    a(f"v_mov_b32 v{vM}, 0xff7fffff")
    a(f"v_mov_b32 v{vM+2}, 0")
    a(f"v_mov_b32 v{vM+4}, 0")
    if os.environ.get("NOQ"): a("s_branch L_lwdc")
    a("s_branch L_qwait")

    a("L_w0q:")
    gemv_addr(a, 16, 17, L_O, L_XN)
    a("s_lshl_b32 s60, s10, 10"); a("s_lshl_b32 s57, s11, 5"); a("s_add_u32 s60, s60, s57")
    a(f"s_lshl_b32 s61, s10, {CSH}")
    a("s_waitcnt vmcnt(19)")
    for m in range(8):
        a(f"ds_write_b128 v6, v[{28+4*m}:{31+4*m}] offset:{L_O + 1024*m}")
    lds_wait("x", L_XCNT, 4)
    stamp(a, 13)
    for half in range(2):
        if half == 1:
            a("s_waitcnt vmcnt(11)")
            for m in range(8):
                a(f"ds_write_b128 v6, v[{60+4*m}:{63+4*m}] offset:{L_O + 1024*m}")
        for bt in range(2):
            for k4 in range(4):
                ks = 4*bt + k4
                r = 92 + 8*k4
                a(f"ds_read_b64_tr_b16 v[{r}:{r+1}], v16 offset:{ks*1024}")
                a(f"ds_read_b64_tr_b16 v[{r+2}:{r+3}], v16 offset:{ks*1024 + 128}")
                a(f"ds_read_b128 v[{r+4}:{r+7}], v17 offset:{(half*8 + ks)*64}")
            for k4 in range(4):
                r = 92 + 8*k4
                a(f"s_waitcnt lgkmcnt({9 - 3*k4})")
                c = "0" if (half == 0 and bt == 0 and k4 == 0) else "v[20:23]"
                a(f"v_mfma_f32_16x16x32_bf16 v[20:23], v[{r}:{r+3}], v[{r+4}:{r+7}], {c}")
    a("v_cvt_pk_bf16_f32 v20, v20, v21")
    a("v_cvt_pk_bf16_f32 v21, v22, v23")
    for k in range(16):
        bb, g = k // 4, k % 4
        a(f"v_readlane_b32 s{64+2*k}, v20, {16*g + bb}")
        a(f"v_readlane_b32 s{65+2*k}, v21, {16*g + bb}")
        a(f"s_atomic_swap_x2 s[{64+2*k}:{65+2*k}], s[8:9], s60 offset:{bb*8192 + g*8} glc")
    a("s_mov_b32 s62, 1")
    a("s_waitcnt vmcnt(0) lgkmcnt(0)")
    stamp(a, 10)
    a("s_atomic_add s62, s[4:5], s61 glc")
    a("s_waitcnt lgkmcnt(0)")
    stamp(a, 11)
    a("s_cmp_lg_u32 s62, 31")
    a("s_cbranch_scc1 L_notlast")
    a("s_lshl_b32 s56, s10, 7"); a(f"s_add_u32 s56, s56, {WS_MB}")
    a("s_mov_b32 s62, 2")
    for i in range(32):
        a(f"s_atomic_add s62, s[8:9], s56 offset:{1024*i}")
    a("L_notlast:")
    a("s_lshl_b32 s63, s2, 7"); a(f"s_add_u32 s63, s63, {WS_MB}")
    a("s_mov_b32 s62, 0")
    a("L_qpoll:")
    a("s_load_dword s56, s[8:9], s63 glc")
    a("s_waitcnt lgkmcnt(0)")
    a("s_cmp_eq_u32 s56, 1")
    a("s_cbranch_scc1 L_qgot")
    a("s_sleep 1")
    a("s_add_u32 s62, s62, 1")
    a(f"s_cmp_lt_u32 s62, {SPIN}")
    a("s_cbranch_scc1 L_qpoll")
    a("L_qgot:")
    lds_inc(L_QF)
    stamp(a, 12)
    a("s_branch L_qf")
    a("L_qwait:")
    lds_wait("q", L_QF, 1)
    a("L_qf:")
    stamp(a)
    a("s_lshl_b32 s56, s12, 13"); a("s_lshl_b32 s57, s10, 10"); a("s_add_u32 s56, s56, s57")
    a("s_lshl_b32 s57, s3, 7"); a("s_add_u32 s56, s56, s57")
    a("s_add_u32 s57, s56, 64")
    a("s_load_dwordx16 s[64:79], s[8:9], s56 glc")
    a("s_load_dwordx16 s[80:95], s[8:9], s57 glc")
    a("s_lshl_b32 s56, s3, 7"); a(f"s_add_u32 s56, s56, {L_QL}")
    a("v_lshlrev_b32 v4, 2, v1")
    a("v_add_u32 v4, s56, v4")
    a("s_waitcnt lgkmcnt(0)")
    for i in range(32):
        a(f"v_writelane_b32 v5, s{64+i}, {i}")
    a("s_mov_b32 exec_lo, -1"); a("s_mov_b32 exec_hi, 0")
    a("ds_write_b32 v4, v5")
    a("s_mov_b64 exec, -1")
    lds_inc(L_QCNT)
    stamp(a)
    a("s_cmp_ge_u32 s3, 4"); a("s_cbranch_scc1 L_cons")
    if DYN: a("s_cmp_eq_u32 s3, 2"); a("s_cbranch_scc1 L_claimer")
    a("s_cmp_lg_u32 s3, 0"); a("s_cbranch_scc1 L_epi")
    a("s_cmp_lt_u32 s11, 16"); a("s_cbranch_scc1 L_epi")
    a("s_mov_b32 s62, 0")
    a("L_cnt:")
    load_counters(a)
    a("s_waitcnt lgkmcnt(0)")
    a("s_and_b32 s56, s64, s65")
    a("s_or_b32 s57, s64, s65")
    for k in range(2, 8):
        a(f"s_and_b32 s56, s56, s{64+k}")
        a(f"s_or_b32 s57, s57, s{64+k}")
    a("s_cmp_lg_u32 s56, 32")
    a("s_cbranch_scc1 L_cnt_retry")
    a("s_cmp_eq_u32 s57, 32")
    a("s_cbranch_scc1 L_epi")
    a("L_cnt_retry:")
    a("s_sleep 32")
    a("s_add_u32 s62, s62, 1")
    a(f"s_cmp_lt_u32 s62, {SPIN}")
    a("s_cbranch_scc1 L_cnt")
    a("s_branch L_epi")

    sI, sIDX, sCTO = 64, 65, 66
    if DYN:
        a("L_claimer:")
        a(f"s_lshr_b32 s{sCTO}, s14, 3"); a(f"s_lshl_b32 s{sCTO}, s{sCTO}, 7"); a(f"s_add_u32 s{sCTO}, s{sCTO}, {WS_CT}")
        a(f"s_mov_b32 s{sI}, {S0}")
        a("v_mov_b32 v9, 0")
        a("s_mov_b32 s68, 0")
        a("L_cl:")
        a(f"ds_read_b32 v10, v9 offset:{L_PROG}")
        a("s_waitcnt lgkmcnt(0)")
        a("v_readfirstlane_b32 s56, v10")
        a(f"s_add_u32 s56, s56, {LA}")
        a(f"s_sub_i32 s63, s56, s{sI}")
        a(f"s_cmp_ge_i32 s63, {CMIN}")
        a("s_cbranch_scc1 L_clgo")
        a("s_sleep 2")
        a("s_add_u32 s68, s68, 1")
        a(f"s_cmp_lt_u32 s68, {SPIN*16}")
        a("s_cbranch_scc1 L_cl")
        a("s_branch L_epi")
        a("L_clgo:")
        a("s_mov_b32 s62, s63")
        a(f"s_atomic_add s62, s[8:9], s{sCTO} glc")
        a(f"v_add_u32 v12, s{sI}, v1")
        a("v_and_b32 v11, 15, v12")
        a("v_lshlrev_b32 v11, 2, v11")
        a("v_lshlrev_b32 v12, 16, v12")
        a("v_add_u32 v12, v12, v1")
        a("s_lshl_b32 s56, 1, s63"); a("s_sub_u32 s56, s56, 1"); a("s_mov_b32 s57, 0")
        a("s_waitcnt lgkmcnt(0)")
        a("s_min_u32 s62, s62, 0x8000")
        a("v_add_u32 v12, s62, v12")
        a("s_mov_b64 exec, s[56:57]")
        a(f"ds_write_b32 v11, v12 offset:{L_CLM}")
        a("s_mov_b64 exec, -1")
        a(f"s_add_u32 s{sI}, s{sI}, s63")
        a("s_add_u32 s62, s62, s63")
        a("s_cmp_le_u32 s62, 512")
        a("s_cbranch_scc1 L_cl")
        a("s_branch L_epi")

    a("L_loader:")
    if not os.environ.get("NOPRIO"): a("s_setprio 3")
    a("v_xor_b32 v7, v2, v3")
    a("v_lshlrev_b32 v5, 8, v3")
    a(f"v_lshl_add_u32 v{vDK}, v7, 4, v5")
    for u in range(1, 4):
        a(f"v_xor_b32 v{vDK+u}, {u<<6:#x}, v{vDK}")
    a("v_lshlrev_b32 v4, 1, v3")
    a("v_xor_b32 v4, v2, v4")
    a(f"v_lshl_add_u32 v{vDV}, v4, 4, v5")
    a(f"v_xor_b32 v{vDV+1}, 0x80, v{vDV}")
    if NOSW:
        for r in range(6): a(f"v_mov_b32 v{vDK+r}, v6")
    a(f"s_lshr_b32 s70, s14, 3"); a(f"s_mul_i32 s70, s70, {ROT}")
    PL = 2 if THR < 16 else 3
    sSL, sPS, sFE = 71, 72, 73
    def pub(sval):
        a(f"v_mov_b32 v10, {sval}")
        a(f"v_mov_b32 v13, s{sPS}")
        a("s_mov_b64 exec, 1")
        a(f"ds_write_b32 v13, v10 offset:{L_FLG}")
        a("s_mov_b64 exec, -1")
        a(f"s_add_u32 s{sPS}, s{sPS}, 8")
        a(f"s_cmp_eq_u32 s{sPS}, {8*NSL}")
        a(f"s_cselect_b32 s{sPS}, 0, s{sPS}")
    def fetch_flags():
        a(f"v_mov_b32 v11, s{sFE}")
        a(f"ds_read_b32 v14, v11 offset:{L_FREE}")
        if DYN:
            a(f"s_and_b32 s56, s{sI}, 15"); a("s_lshl_b32 s56, s56, 2")
            a("v_mov_b32 v12, s56")
            a(f"ds_read_b32 v15, v12 offset:{L_CLM}")
    a(f"s_mov_b32 s{sIDX}, s13")
    a(f"s_mov_b32 s{sI}, 0"); a(f"s_mov_b32 s{sSL}, {L_RING}"); a(f"s_mov_b32 s{sPS}, 0"); a(f"s_mov_b32 s{sFE}, 0")
    a("s_mov_b32 s69, 0")
    lstamp(a, 1)
    fetch_flags()
    a("LN_ld:")
    a(f"s_sub_u32 s67, s{sI}, 5")
    a("s_waitcnt lgkmcnt(0)")
    a("v_readfirstlane_b32 s56, v14")
    if DYN:
        a("v_readfirstlane_b32 s57, v15")
        a(f"s_cmp_lt_u32 s{sI}, {S0}")
        a("s_cbranch_scc1 LN_fs")
        a("s_lshr_b32 s63, s57, 16")
        a(f"s_cmp_lg_u32 s63, s{sI}")
        a("s_cbranch_scc1 LN_fr")
        a(f"s_and_b32 s{sIDX}, s57, 0xffff")
        a("LN_fs:")
    a(f"s_cmp_ge_u32 s{sIDX}, 512")
    a("s_cbranch_scc1 L_ldend")
    a("s_cmp_eq_u32 s56, s67")
    a("s_cbranch_scc1 LN_fg")
    a("LN_fr:")
    a("s_sleep 1")
    fetch_flags()
    a("s_add_u32 s69, s69, 1")
    a(f"s_cmp_lt_u32 s69, {SPIN*16}")
    a("s_cbranch_scc1 LN_ld")
    a("s_branch L_ldend")
    a("LN_fg:")
    a(f"s_lshl_b32 s56, s{sIDX}, 13")
    a("s_add_u32 s57, s56, 4096")
    a(f"s_waitcnt vmcnt({THR})")
    for kv in range(2):
        if kv == 1 and HALF: a(f"s_waitcnt vmcnt({THR})")
        for h in range(2):
            a(f"s_add_u32 m0, s{sSL}, {kv*8192 + h*4096}")
            for qq in range(4):
                q = 4*h + qq
                vo = vDK + (q >> 1) if kv == 0 else vDV + ((q >> 1) & 1)
                sr = sK if kv == 0 else sV
                a(f"buffer_load_dwordx4 v{vo}, s[{sr}:{sr+3}], s{56+h} offen offset:{1024*qq}{NT} lds")
    a(f"s_add_u32 s{sIDX}, s{sIDX}, 8")
    a(f"s_add_u32 s{sSL}, s{sSL}, 16384"); a(f"s_add_u32 s{sFE}, s{sFE}, 4")
    a(f"s_cmp_eq_u32 s{sFE}, {4*NSL}")
    a(f"s_cselect_b32 s{sFE}, 0, s{sFE}"); a(f"s_cselect_b32 s{sSL}, {L_RING}, s{sSL}")
    a(f"s_cmp_lt_u32 s{sI}, {PL}")
    a("s_cbranch_scc1 LN_np")
    a(f"s_sub_u32 s67, s{sI}, {PL - 1}")
    pub("s67")
    a("LN_np:")
    a(f"s_add_u32 s{sI}, s{sI}, 1")
    if DYN:
        a(f"v_mov_b32 v10, s{sI}")
        a("s_mov_b64 exec, 1")
        a(f"ds_write_b32 v9, v10 offset:{L_PROG}")
        a("s_mov_b64 exec, -1")
    fetch_flags()
    if STAMP:
        a(f"s_cmp_lg_u32 s{sI}, 30"); a("s_cbranch_scc1 LN_nomid")
        lstamp(a, 5)
        a("LN_nomid:")
    a(f"s_cmp_lg_u32 s{sI}, 6")
    a("s_cbranch_scc1 LN_ld")
    a("s_cmp_ge_u32 s11, 30"); a("s_cbranch_scc1 L_wd")
    if os.environ.get("NODMA"): a("s_branch L_wd")
    a("s_cmp_ge_u32 s11, 16"); a("s_cbranch_scc1 L_wf")
    a("v_lshrrev_b32 v4, 2, v1")
    a("v_lshlrev_b32 v4, 10, v4")
    a("v_and_b32 v5, 3, v1")
    a("v_lshl_add_u32 v4, v5, 4, v4")
    a("s_lshl_b32 s56, s10, 19"); a("s_lshl_b32 s57, s11, 6"); a("s_add_u32 s56, s56, s57")
    a(f"s_mov_b32 s57, {L_W1}")
    a("LN_wo:")
    a(f"s_waitcnt vmcnt({WTHR})")
    for n in range(4):
        a("s_mov_b32 m0, s57")
        a(f"buffer_load_dwordx4 v4, s[{sW1}:{sW1+3}], s56 offen{DNT} lds")
        a("s_add_u32 s56, s56, 16384"); a("s_add_u32 s57, s57, 1024")
    a(f"s_cmp_lt_u32 s57, {L_W1 + 32768}")
    a("s_cbranch_scc1 LN_wo")
    a("s_branch L_wd")
    a("L_wf:")
    a("v_lshrrev_b32 v4, 1, v1")
    a("s_movk_i32 s56, 3584")
    a("v_mul_lo_u32 v4, v4, s56")
    a("v_and_b32 v5, 1, v1")
    a("v_lshl_add_u32 v4, v5, 4, v4")
    a("s_lshl_b32 s56, s15, 5")
    a("s_lshl_b32 s63, s15, 14")
    a(f"s_mov_b32 s57, {L_W1}")
    a("LN_wfl:")
    a(f"s_waitcnt vmcnt({WTHR})")
    a("s_mov_b32 m0, s57")
    a(f"buffer_load_dwordx4 v4, s[{sW1}:{sW1+3}], s56 offen{DNT} lds")
    a("s_add_u32 m0, s57, 16384")
    a(f"buffer_load_dwordx4 v4, s[{sW2}:{sW2+3}], s56 offen{DNT} lds")
    a("s_add_u32 m0, s57, 32768")
    a(f"buffer_load_dwordx4 v6, s[{sW3}:{sW3+3}], s63 offen{DNT} lds")
    a(f"s_add_u32 s56, s56, {32*3584}"); a("s_add_u32 s57, s57, 1024"); a("s_add_u32 s63, s63, 1024")
    a(f"s_cmp_lt_u32 s57, {L_W1 + 16384}")
    a("s_cbranch_scc1 LN_wfl")
    a("L_wd:")
    lstamp(a, 2)
    fetch_flags()
    a("s_branch LN_ld")
    a("L_ldend:")
    lstamp(a, 3)
    if STAMP:
        a("v_mov_b32 v10, s69")
        a(f"ds_write_b32 v9, v10 offset:{L_FLG + 60}")
    a("v_lshlrev_b32 v11, 3, v1")
    a(f"v_mov_b32 v10, s{sI}")
    a("s_mov_b64 exec, 63")
    a(f"ds_write_b32 v11, v10 offset:{L_FLG + 4}")
    a("s_mov_b64 exec, -1")
    for r in range(PL, 0, -1):
        a(f"s_sub_u32 s67, s{sI}, {r - 1}")
        a(f"s_waitcnt vmcnt({16*(r-1)})")
        pub("s67")
    a("s_waitcnt lgkmcnt(0)")
    if STAMP:
        lstamp(a, 4)
        a("v_lshlrev_b32 v4, 2, v1")
        a("s_lshl_b32 s56, s2, 6"); a(f"s_add_u32 s56, s56, {WS_TS + 0x4000}")
        a("s_mov_b64 exec, 0xffff")
        a(f"buffer_store_dword v{vST}, v4, s[{sWS}:{sWS+3}], s56 offen")
    a("s_endpgm")

    a("L_cons:")
    a("v_and_b32 v7, 3, v2")
    a("v_lshlrev_b32 v7, 8, v7")
    a("v_lshl_add_u32 v7, v3, 4, v7")
    lds_wait("c", L_QCNT, 8)
    for t in range(4):
        a(f"ds_read_b128 v[{vQ+4*t}:{vQ+4*t+3}], v7 offset:{L_QL + 64*t}")
    a(f"s_mov_b32 s{sN}, s{sC}")
    a(f"s_mov_b32 s64, s{sC}")
    a("L_poll:")
    a(f"s_lshl_b32 s56, s64, 3")
    a(f"v_mov_b32 v{vF}, s56")
    a(f"s_add_u32 s65, s{sN}, 1")
    a("s_mov_b32 s62, 0")
    a("L_poll1:")
    a(f"ds_read_b64 v[{vT}:{vT+1}], v{vF} offset:{L_FLG}")
    a("s_waitcnt lgkmcnt(0)")
    a(f"v_readfirstlane_b32 s56, v{vT}")
    a(f"v_readfirstlane_b32 s57, v{vT+1}")
    a("s_cmp_eq_u32 s56, s65")
    a("s_cbranch_scc1 L_go")
    a(f"s_cmp_ge_u32 s{sN}, s57")
    a("s_cbranch_scc1 L_cdone")
    a("s_sleep 1")
    a("s_add_u32 s62, s62, 1")
    a(f"s_cmp_lt_u32 s62, {SPIN*16}")
    a("s_cbranch_scc1 L_poll1")
    a("s_branch L_cdone")
    a("L_go:")
    for tb in range(2):
        for t in range(4):
            r = vKD + 16*tb + 4*t
            if not NOCOMP: a(f"ds_read_b128 v[{r}:{r+3}], v{vKA+t} offset:{1024*tb}")
    for T in range(3):
        for hh in range(2):
            r = vVD + 4*T + 2*hh
            if not NOCOMP: a(f"ds_read_b64_tr_b16 v[{r}:{r+1}], v{vVA+T} offset:{8192 + 1024*hh}")
    a("s_waitcnt lgkmcnt(10)")
    for tb in range(2):
        d = vS + 4*tb
        if tb == 1: a("s_waitcnt lgkmcnt(6)")
        for t in range(4):
            r = vKD + 16*tb + 4*t
            c = "0" if t == 0 else f"v[{d}:{d+3}]"
            a(f"v_mfma_f32_16x16x32_bf16 v[{d}:{d+3}], v[{r}:{r+3}], v[{vQ+4*t}:{vQ+4*t+3}], {c}")
    for T in range(3, 8):
        if T == 7: a("s_waitcnt lgkmcnt(8)")
        for hh in range(2):
            r = vVD + 4*T + 2*hh
            if not NOCOMP: a(f"ds_read_b64_tr_b16 v[{r}:{r+1}], v{vVA+T} offset:{8192 + 1024*hh}")
    a(f"s_lshl_b32 s56, s64, 2")
    a(f"v_mov_b32 v{vF}, s56")
    a(f"s_add_u32 s65, s{sN}, 1")
    a(f"v_mov_b32 v{vF+1}, s65")
    a("s_add_u32 s64, s64, 4")
    a("s_mov_b32 s66, 65536")
    a(f"s_cmp_ge_u32 s64, {NSL}")
    a("s_cselect_b32 s66, -32768, s66")
    a(f"s_cselect_b32 s57, {NSL}, 0")
    a("s_sub_u32 s64, s64, s57")
    for p in range(4):
        s0, s1 = vS + 2*p, vS + 2*p + 1
        a(f"v_cvt_pk_bf16_f32 v{vT}, v{s0}, v{s1}")
        a(f"v_lshlrev_b32 v{s0}, 16, v{vT}")
        a(f"v_and_b32 v{s1}, 0xffff0000, v{vT}")
        a(f"v_mul_f32 v{s0}, s{sSC}, v{s0}")
        a(f"v_mul_f32 v{s1}, s{sSC}, v{s1}")
        a(f"v_cvt_pk_bf16_f32 v{vT}, v{s0}, v{s1}")
        a(f"v_lshlrev_b32 v{s0}, 16, v{vT}")
        a(f"v_and_b32 v{s1}, 0xffff0000, v{vT}")
        a(f"v_max3_f32 v{vM+1}, v{s0}, v{s1}, v{vM if p == 0 else vM+1}")
    a(f"v_mov_b32 v{vM+3}, v{vM+1}")
    a(f"v_permlane16_swap_b32 v{vM+1}, v{vM+3}")
    a(f"v_max_f32 v{vM+1}, v{vM+1}, v{vM+3}")
    a(f"v_mov_b32 v{vM+3}, v{vM+1}")
    a(f"v_permlane32_swap_b32 v{vM+1}, v{vM+3}")
    a(f"v_max_f32 v{vM+1}, v{vM+1}, v{vM+3}")
    a("s_waitcnt lgkmcnt(0)")
    a("s_mov_b64 exec, 1")
    a(f"ds_write_b32 v{vF}, v{vF+1} offset:{L_FREE}")
    a("s_mov_b64 exec, -1")
    for r in range(12):
        a(f"v_add_u32 v{vKA+r}, s66, v{vKA+r}")
    a(f"v_cmp_lt_f32 vcc, v{vM}, v{vM+1}")
    a("s_cmp_eq_u64 vcc, 0")
    a("s_cbranch_scc1 L_nores")
    a(f"v_sub_f32 v{vM+3}, v{vM}, v{vM+1}")
    a(f"v_mul_f32 v{vM+3}, s{sL2}, v{vM+3}")
    a(f"v_exp_f32 v{vM+3}, v{vM+3}")
    a(f"v_mov_b32 v{vM}, v{vM+1}")
    a(f"v_mul_f32 v{vM+4}, s{sL2}, v{vM+1}")
    a(f"v_mul_f32 v{vM+2}, v{vM+3}, v{vM+2}")
    for r in range(32):
        a(f"v_mul_f32 v{vA+r}, v{vM+3}, v{vA+r}")
    a("L_nores:")
    for i in range(8):
        s0 = vS + i
        a(f"v_fma_f32 v{s0}, v{s0}, s{sL2}, -v{vM+4}")
        a(f"v_exp_f32 v{s0}, v{s0}")
        a(f"v_add_f32 v{vM+2}, v{vM+2}, v{s0}")
    for p in range(4):
        a(f"v_cvt_pk_bf16_f32 v{vP+p}, v{vS+2*p}, v{vS+2*p+1}")
    for T in range(8):
        acc = vA + 4*T
        a(f"v_mfma_f32_16x16x32_bf16 v[{acc}:{acc+3}], v[{vVD+4*T}:{vVD+4*T+3}], v[{vP}:{vP+3}], v[{acc}:{acc+3}]")
    a(f"s_add_u32 s{sN}, s{sN}, 4")
    a("s_branch L_poll")
    a("L_cdone:")
    a(f"v_mov_b32 v{vM+1}, v{vM+2}")
    a(f"v_permlane16_swap_b32 v{vM+2}, v{vM+1}")
    a(f"v_add_f32 v{vM+2}, v{vM+2}, v{vM+1}")
    a(f"v_mov_b32 v{vM+1}, v{vM+2}")
    a(f"v_permlane32_swap_b32 v{vM+2}, v{vM+1}")
    a(f"v_add_f32 v{vM+1}, v{vM+2}, v{vM+1}")
    a(f"s_lshl_b32 s56, s{sC}, 11")
    a("v_lshlrev_b32 v6, 9, v2")
    a("v_lshl_add_u32 v6, v3, 4, v6")
    a("v_add_u32 v6, s56, v6")
    a(f"s_lshl_b32 s57, s{sC}, 3")
    a("v_lshlrev_b32 v7, 6, v2")
    a("v_add_u32 v7, s57, v7")
    a("v_cmp_gt_u32 vcc, 4, v2")
    a("s_and_saveexec_b64 s[58:59], vcc")
    for e in range(8):
        acc = vA + 4*e
        a(f"ds_write_b128 v6, v[{acc}:{acc+3}] offset:{L_O + e*64}")
    a(f"ds_write_b64 v7, v[{vM}:{vM+1}] offset:{L_ML}")
    a("s_mov_b64 exec, s[58:59]")
    a("L_epi:")
    a("s_waitcnt vmcnt(0) lgkmcnt(0)")
    a("s_barrier")
    stamp_n[0] = 4
    stamp(a)
    if STAMP:
        a("v_mov_b32 v6, 0")
        a(f"ds_read_b32 v6, v6 offset:{L_FLG+4}")
        a("s_waitcnt lgkmcnt(0)")
        a("v_readfirstlane_b32 s56, v6")
        a(f"v_writelane_b32 v{vST}, s56, 14")
        a("v_mov_b32 v6, 0")
        a(f"ds_read_b32 v6, v6 offset:{L_FLG+60}")
        a("s_waitcnt lgkmcnt(0)")
        a("v_readfirstlane_b32 s56, v6")
        a(f"v_writelane_b32 v{vST}, s56, 3")
    a("s_cmp_ge_u32 s3, 2")
    a("s_cbranch_scc1 L_role")
    a("v_lshrrev_b32 v6, 5, v0")
    a("v_lshlrev_b32 v8, 6, v6")
    for i in range(2):
        a(f"ds_read_b128 v[{24+4*i}:{24+4*i+3}], v8 offset:{L_ML + 16*i}")
    a("v_lshlrev_b32 v9, 4, v0")
    for w in range(4):
        a(f"ds_read_b128 v[{40+4*w}:{43+4*w}], v9 offset:{L_O + w*2048}")
    a("s_waitcnt lgkmcnt(4)")
    a("v_max_f32 v10, v24, v26")
    a("v_max3_f32 v10, v28, v30, v10")
    a("v_mov_b32 v11, 0")
    for w in range(4):
        a(f"v_sub_f32 v{24+2*w}, v{24+2*w}, v10")
        a(f"v_mul_f32 v{24+2*w}, s{sL2}, v{24+2*w}")
        a(f"v_exp_f32 v{24+2*w}, v{24+2*w}")
        a(f"v_fmac_f32 v11, v{24+2*w}, v{25+2*w}")
    a("s_waitcnt lgkmcnt(0)")
    for c in range(4):
        a(f"v_mul_f32 v{12+c}, v24, v{40+c}")
    for w in range(1, 4):
        for c in range(4):
            a(f"v_fmac_f32 v{12+c}, v{24+2*w}, v{40+4*w+c}")
    for r in (10, 11, 12, 13, 14, 15):
        a(f"v_min_u32 v{r}, -2, v{r}")
    a("s_lshl_b32 s56, s14, 11"); a(f"s_add_u32 s56, s56, {WS_PO}")
    a(f"buffer_store_dwordx4 v[12:15], v9, s[{sWS}:{sWS+3}], s56 offen sc1")
    a("s_lshl_b32 s56, s14, 5"); a(f"s_add_u32 s56, s56, {WS_ML}")
    a("v_lshlrev_b32 v8, 3, v6")
    a("v_and_b32 v7, 31, v0")
    a("v_cmp_eq_u32 vcc, 0, v7")
    a("s_and_saveexec_b64 s[58:59], vcc")
    a(f"buffer_store_dwordx2 v[10:11], v8, s[{sWS}:{sWS+3}], s56 offen sc1")
    a("s_mov_b64 exec, s[58:59]")
    a("L_role:")
    stamp(a)
    if os.environ.get("NOTAIL"): a("s_branch L_fin")
    a("s_cmp_ge_u32 s11, 30"); a("s_cbranch_scc1 L_Z")
    a("s_cmp_ge_u32 s11, 16"); a("s_cbranch_scc1 L_F")

    a("v_lshrrev_b32 v6, 7, v0")
    a("v_and_b32 v7, 127, v0")
    a("v_lshlrev_b32 v16, 14, v6")
    a("v_lshl_add_u32 v16, v7, 4, v16")
    a("v_lshlrev_b32 v17, 8, v6")
    a("v_lshrrev_b32 v18, 5, v7")
    a("v_lshl_add_u32 v17, v18, 3, v17")
    a("s_lshl_b32 s63, s10, 10"); a(f"s_add_u32 s63, s63, {WS_ML}")
    gemv_addr(a, 76, 77, L_W1, L_XN, rowsh=6)
    a("s_mov_b32 s62, 0")
    a("L_o1:")
    for s in range(8):
        a(f"buffer_load_dwordx2 v[{20+2*s}:{21+2*s}], v17, s[{sWS}:{sWS+3}], s63 offen offset:{32*s} sc1")
    a("s_waitcnt vmcnt(0)")
    sent_check(a, range(20, 36), 10)
    poll_tail(a, "L_o1")
    a("s_mov_b32 s62, 0")
    a("L_o2:")
    a("s_lshl_b32 s63, s10, 16"); a(f"s_add_u32 s63, s63, {WS_PO}")
    for s in range(8):
        if s % 2 == 0 and s > 0:
            a("s_add_u32 s63, s63, 4096")
        a(f"buffer_load_dwordx4 v[{36+4*s}:{39+4*s}], v16, s[{sWS}:{sWS+3}], s63 offen offset:{2048*(s%2)} sc1")
    a("s_waitcnt vmcnt(0)")
    sent_check(a, range(36, 68), 10)
    poll_tail(a, "L_o2")
    stamp(a)
    a("v_max_f32 v10, v20, v22")
    for s in range(2, 8):
        a(f"v_max_f32 v10, v10, v{20+2*s}")
    a("v_mov_b32 v11, 0")
    for s in range(8):
        a(f"v_sub_f32 v{20+2*s}, v{20+2*s}, v10")
        a(f"v_mul_f32 v{20+2*s}, s{sL2}, v{20+2*s}")
        a(f"v_exp_f32 v{20+2*s}, v{20+2*s}")
        a(f"v_fmac_f32 v11, v{20+2*s}, v{21+2*s}")
    for c in range(4):
        a(f"v_mul_f32 v{12+c}, v20, v{36+c}")
    for s in range(1, 8):
        for c in range(4):
            a(f"v_fmac_f32 v{12+c}, v{20+2*s}, v{36+4*s+c}")
    a("v_rcp_f32 v10, v11")
    for c in range(4):
        a(f"v_mul_f32 v18, v{12+c}, v10")
        a(f"v_fma_f32 v19, -v18, v11, v{12+c}")
        a(f"v_fma_f32 v{12+c}, v19, v10, v18")
    a("v_cvt_pk_bf16_f32 v12, v12, v13")
    a("v_cvt_pk_bf16_f32 v13, v14, v15")
    a("v_lshlrev_b32 v10, 3, v0")
    a(f"ds_write_b64 v10, v[12:13] offset:{L_XN}")
    a("s_waitcnt lgkmcnt(0)")
    a("s_barrier")
    gemv_wave(a, 36, 76, 77, 40, woff=0, rowb=64)
    gemv_wave(a, 56, 76, 77, 60, woff=32, rowb=64)
    a("s_lshl_b32 s56, s3, 9"); a(f"s_add_u32 s56, s56, {L_RED}")
    a("v_lshlrev_b32 v4, 7, v2")
    a("v_lshl_add_u32 v4, v3, 4, v4")
    a("v_add_u32 v4, s56, v4")
    a("v_cmp_gt_u32 vcc, 4, v2")
    a("s_and_saveexec_b64 s[58:59], vcc")
    a("ds_write_b128 v4, v[36:39]")
    a("ds_write_b128 v4, v[56:59] offset:64")
    a("s_mov_b64 exec, s[58:59]")
    a("s_waitcnt lgkmcnt(0)")
    a("s_barrier")
    a("s_cmp_lg_u32 s3, 0")
    a("s_cbranch_scc1 L_fin")
    a("v_and_b32 v5, 31, v1")
    a("v_lshlrev_b32 v4, 4, v5")
    for w in range(8):
        a(f"ds_read_b128 v[{8+4*w}:{11+4*w}], v4 offset:{L_RED + w*512}")
    a("v_lshrrev_b32 v4, 3, v5"); a("v_lshlrev_b32 v4, 11, v4")
    a("v_and_b32 v5, 7, v5"); a("v_lshl_add_u32 v4, v5, 4, v4")
    a("s_lshl_b32 s56, s10, 13"); a("s_lshl_b32 s57, s11, 7"); a("s_add_u32 s56, s56, s57"); a(f"s_add_u32 s56, s56, {WS_AO}")
    a("s_waitcnt lgkmcnt(0)")
    for w in range(1, 8):
        for c in range(4):
            a(f"v_add_f32 v{8+c}, v{8+c}, v{8+4*w+c}")
    for c in range(4):
        a(f"v_min_u32 v{8+c}, -2, v{8+c}")
    a("s_mov_b32 exec_lo, -1"); a("s_mov_b32 exec_hi, 0")
    a(f"buffer_store_dwordx4 v[8:11], v4, s[{sWS}:{sWS+3}], s56 offen sc1")
    a("s_mov_b64 exec, -1")
    a("s_branch L_fin")

    a("L_F:")
    a("v_lshlrev_b32 v16, 4, v0")
    a("v_lshlrev_b32 v17, 3, v0")
    a(f"buffer_load_dwordx2 v[18:19], v17, s[{sX}:{sX+3}], 0 offen")
    gemv_addr(a, 76, 77, L_W1, L_XN)
    a("s_and_b32 s63, s15, 7"); a("s_lshl_b32 s63, s63, 13"); a(f"s_add_u32 s63, s63, {WS_AO}")
    a("s_mov_b32 s62, 0")
    a("L_f1:")
    a(f"buffer_load_dwordx4 v[36:39], v16, s[{sWS}:{sWS+3}], s63 offen sc1")
    a("s_waitcnt vmcnt(0)")
    sent_check(a, range(36, 40), 10)
    poll_tail(a, "L_f1")
    a("s_mov_b32 s62, 0")
    a("L_f2:")
    a(f"s_mov_b32 s63, {WS_AO}")
    for k in range(8):
        a(f"buffer_load_dwordx4 v[{36+4*k}:{39+4*k}], v16, s[{sWS}:{sWS+3}], s63 offen sc1")
        if k < 7: a("s_add_u32 s63, s63, 8192")
    a("s_waitcnt vmcnt(0)")
    sent_check(a, range(36, 68), 10)
    poll_tail(a, "L_f2")
    stamp(a)
    for k in range(1, 8):
        for c in range(4):
            a(f"v_add_f32 v{36+c}, v{36+c}, v{36+4*k+c}")
    for c in range(4): rbf(a, 36+c)
    a("v_lshlrev_b32 v40, 16, v18"); a("v_and_b32 v41, 0xffff0000, v18")
    a("v_lshlrev_b32 v42, 16, v19"); a("v_and_b32 v43, 0xffff0000, v19")
    for c in range(4): a(f"v_add_f32 v{36+c}, v{36+c}, v{40+c}")
    a("v_cvt_pk_bf16_f32 v36, v36, v37")
    a("v_cvt_pk_bf16_f32 v37, v38, v39")
    a(f"ds_write_b64 v17, v[36:37] offset:{L_HB}")
    a("s_waitcnt lgkmcnt(0)")
    a("s_barrier")
    a("s_cmp_ge_u32 s3, 4")
    a("s_cbranch_scc1 L_f_skip")
    a(f"ds_read_b128 v[16:19], v16 offset:{L_HB}")
    a("v_lshlrev_b32 v6, 4, v0")
    a("s_waitcnt lgkmcnt(0)")
    layernorm(a, 16, 20, 28)
    a(f"ds_write_b128 v6, v[16:19] offset:{L_XN}")
    a("L_f_skip:")
    a("s_waitcnt lgkmcnt(0)")
    a("s_barrier")
    gemv_wave(a, 36, 76, 77, 40)
    gemv_wave(a, 56, 76, 77, 60, woff=16384)
    a("s_lshl_b32 s56, s3, 8"); a(f"s_add_u32 s56, s56, {L_RED}")
    a("v_lshlrev_b32 v4, 6, v2")
    a("v_lshl_add_u32 v4, v3, 4, v4")
    a("v_add_u32 v4, s56, v4")
    a("v_cmp_gt_u32 vcc, 4, v2")
    a("s_and_saveexec_b64 s[58:59], vcc")
    a("ds_write_b128 v4, v[36:39]")
    a("ds_write_b128 v4, v[56:59] offset:2048")
    a("s_mov_b64 exec, s[58:59]")
    a("s_waitcnt lgkmcnt(0)")
    a("s_barrier")
    a("s_cmp_ge_u32 s3, 1")
    a("s_cbranch_scc1 L_f_skip2")
    a("v_lshlrev_b32 v4, 2, v1")
    for w in range(8):
        a(f"ds_read_b32 v{8+w}, v4 offset:{L_RED + w*256}")
        a(f"ds_read_b32 v{16+w}, v4 offset:{L_RED + 2048 + w*256}")
    a("s_waitcnt lgkmcnt(0)")
    for w in range(1, 8):
        a(f"v_add_f32 v8, v8, v{8+w}")
        a(f"v_add_f32 v16, v16, v{16+w}")
    rbf(a, 8); rbf(a, 16)
    a("v_mul_f32 v9, v8, v8")
    a("v_mul_f32 v9, 0x3d372713, v9")
    a("v_fma_f32 v9, v9, v8, v8")
    a("v_mul_f32 v9, 0xc0135761, v9")
    a("v_exp_f32 v9, v9")
    a("v_add_f32 v9, 1.0, v9")
    a("v_rcp_f32 v10, v9")
    a("v_mul_f32 v11, v8, v10")
    a("v_fma_f32 v12, -v11, v9, v8")
    a("v_fma_f32 v12, v12, v10, v11")
    a("v_cmp_gt_f32 vcc, 0x7f000000, v9")
    a("v_cndmask_b32 v11, v11, v12, vcc")
    rbf(a, 11)
    a("v_mul_f32 v11, v11, v16")
    a("v_cvt_pk_bf16_f32 v11, v11, v11")
    a("v_lshlrev_b32 v4, 1, v1")
    a(f"ds_write_b16 v4, v11 offset:{L_ACT}")
    a("L_f_skip2:")
    a("s_waitcnt lgkmcnt(0)")
    a("s_barrier")
    a("v_and_b32 v5, 3, v2")
    a("v_lshlrev_b32 v4, 5, v5")
    a("v_lshl_add_u32 v4, v3, 3, v4")
    a(f"ds_read_b64 v[8:9], v4 offset:{L_ACT}")
    a("v_lshrrev_b32 v6, 2, v2")
    a("v_lshl_add_u32 v6, v3, 2, v6")
    a("v_lshlrev_b32 v6, 10, v6")
    a("v_lshl_add_u32 v6, v5, 3, v6")
    a("s_lshl_b32 s56, s3, 7"); a(f"s_add_u32 s56, s56, {L_W3}")
    a("v_add_u32 v6, s56, v6")
    for m in range(4):
        a(f"ds_read_b64_tr_b16 v[{10+2*m}:{11+2*m}], v6 offset:{32*m}")
    a("s_waitcnt lgkmcnt(0)")
    for m in range(4):
        a(f"v_mfma_f32_16x16x16_bf16 v[{20+4*m}:{23+4*m}], v[{10+2*m}:{11+2*m}], v[8:9], 0")
    a("v_lshlrev_b32 v4, 11, v2")
    a("v_lshl_add_u32 v4, v3, 4, v4")
    a("s_lshl_b32 s56, s15, 13"); a("s_lshl_b32 s57, s3, 8"); a("s_add_u32 s56, s56, s57"); a(f"s_add_u32 s56, s56, {WS_DP}")
    for r in range(20, 36):
        a(f"v_min_u32 v{r}, -2, v{r}")
    a("v_cmp_gt_u32 vcc, 4, v2")
    a("s_and_saveexec_b64 s[58:59], vcc")
    for m in range(4):
        a(f"buffer_store_dwordx4 v[{20+4*m}:{23+4*m}], v4, s[{sWS}:{sWS+3}], s56 offen offset:{64*m} sc1")
    a("s_mov_b64 exec, s[58:59]")
    a("s_branch L_fin")

    a("L_Z:")
    a("v_and_b32 v4, 31, v0")
    a("v_lshrrev_b32 v5, 5, v0")
    a("v_lshlrev_b32 v16, 13, v5")
    a("v_lshl_add_u32 v16, v4, 4, v16")
    a("v_lshlrev_b32 v17, 4, v4")
    a("v_lshlrev_b32 v18, 3, v4")
    a("s_lshl_b32 s57, s15, 8")
    a(f"buffer_load_dwordx2 v[6:7], v18, s[{sX}:{sX+3}], s57 offen")
    a("s_mov_b32 s62, 0")
    a("L_z1:")
    a("s_lshl_b32 s63, s15, 9"); a(f"s_add_u32 s63, s63, {WS_AO}")
    for k in range(8):
        a(f"buffer_load_dwordx4 v[{36+4*k}:{39+4*k}], v17, s[{sWS}:{sWS+3}], s63 offen sc1")
        if k < 7: a("s_add_u32 s63, s63, 8192")
    a("s_waitcnt vmcnt(0)")
    sent_check(a, range(36, 68), 10)
    poll_tail(a, "L_z1", sleep=4)
    for k in range(1, 8):
        for c in range(4):
            a(f"v_add_f32 v{36+c}, v{36+c}, v{36+4*k+c}")
    for c in range(4): rbf(a, 36+c)
    a("v_lshlrev_b32 v40, 16, v6"); a("v_and_b32 v41, 0xffff0000, v6")
    a("v_lshlrev_b32 v42, 16, v7"); a("v_and_b32 v43, 0xffff0000, v7")
    for c in range(4): a(f"v_add_f32 v{72+c}, v{36+c}, v{40+c}")
    for c in range(4): rbf(a, 72+c)
    stamp(a)
    a("s_mov_b32 s62, 0")
    a("L_z2:")
    a("s_lshl_b32 s63, s15, 9"); a(f"s_add_u32 s63, s63, {WS_DP}")
    for k in range(7):
        a(f"buffer_load_dwordx4 v[{36+4*k}:{39+4*k}], v16, s[{sWS}:{sWS+3}], s63 offen sc1")
        if k < 6: a(f"s_add_u32 s63, s63, {16*8192}")
    a("s_waitcnt vmcnt(0)")
    sent_check(a, range(36, 64), 10)
    poll_tail(a, "L_z2")
    stamp(a)
    for k in range(1, 7):
        for c in range(4):
            a(f"v_add_f32 v{36+c}, v{36+c}, v{36+4*k+c}")
    a("v_lshlrev_b32 v6, 4, v0")
    a(f"ds_write_b128 v6, v[36:39] offset:{L_FIN}")
    a("s_waitcnt lgkmcnt(0)")
    a("s_barrier")
    a("s_cmp_lg_u32 s3, 0")
    a("s_cbranch_scc1 L_fin")
    for p in range(16):
        a(f"ds_read_b128 v[{80+4*p}:{83+4*p}], v17 offset:{L_FIN + 512*p}")
    a("s_waitcnt lgkmcnt(0)")
    for p in range(1, 16):
        for c in range(4):
            a(f"v_add_f32 v{80+c}, v{80+c}, v{80+4*p+c}")
    for c in range(4):
        rbf(a, 80+c)
        a(f"v_add_f32 v{80+c}, v{80+c}, v{72+c}")
    a("v_cvt_pk_bf16_f32 v80, v80, v81")
    a("v_cvt_pk_bf16_f32 v81, v82, v83")
    a("s_lshl_b32 s57, s15, 8")
    a("s_mov_b32 exec_lo, -1"); a("s_mov_b32 exec_hi, 0")
    a(f"buffer_store_dwordx2 v[80:81], v18, s[{sOUT}:{sOUT+3}], s57 offen")
    a("s_mov_b64 exec, -1")
    a("L_fin:")
    if STAMP:
        stamp_n[0] = 15
        stamp(a)
        a("s_cmp_lg_u32 s3, 0")
        a("s_cbranch_scc1 L_end")
        a("v_lshlrev_b32 v4, 2, v1")
        a("s_lshl_b32 s56, s2, 6"); a(f"s_add_u32 s56, s56, {WS_TS}")
        a("s_mov_b64 exec, 0xffff")
        a(f"buffer_store_dword v{vST}, v4, s[{sWS}:{sWS+3}], s56 offen")
    a("L_end:")
    a("s_endpgm")
    nv = NV + (1 if STAMP else 0)
    acc = (nv + 3) // 4 * 4
    desc = f""".section .rodata,"a"
.p2align 6
.amdhsa_kernel {name}
  .amdhsa_next_free_vgpr {nv}
  .amdhsa_next_free_sgpr 102
  .amdhsa_accum_offset {acc}
  .amdhsa_group_segment_fixed_size 0
  .amdhsa_kernarg_size 96
  .amdhsa_user_sgpr_count 2
  .amdhsa_user_sgpr_kernarg_segment_ptr 1
  .amdhsa_system_sgpr_workgroup_id_x 1
.end_amdhsa_kernel
"""
    body = a.finalize()
    out = HEADER + f"; @launch grid=(256,1,1) block=(576,1,1) lds={L_END}\n" + '.amdgcn_target "amdgcn-amd-amdhsa--gfx950"\n' + body + desc
    path = sys.argv[1] if len(sys.argv) > 1 else "k3.s"
    open(path, "w").write(out)
    print("wrote", path, len(out))

if __name__ == "__main__":
    main()
```

```python
import sys, os
from asmlib import Asm

NAME = "sequential_preLN__gqa_block_cached__geglu_ffn__decode"
HEADER = open("cdna_kernels/%s.s.ref" % NAME).read().split("; Override launch")[0]

WS_Q    = 0
WS_MB   = 0x8000
WS_PO   = 0x10000
WS_ML   = 0x90000
WS_AO   = 0xA0000
WS_DP   = 0xC0000
WS_TS   = 0x1A0000
WS_CT   = 0x1A8000
WS_SIZE = 0x1D0000 if os.environ.get("STAMP", "0") == "1" else 0x1B0000

LOG2E = 0x3fb8aa3b
SCALE = 0x3db504f3
EPS   = 0x3727c5ac

NSLOT = int(os.environ.get("NSLOT", 4))
NT = " nt" if os.environ.get("NT", "1") == "1" else ""
NTV = " nt" if os.environ.get("NTV", "0") == "1" else ""
STAMP = os.environ.get("STAMP", "0") == "1"
SPIN = 1 << 16
BAR = int(os.environ.get("BAR", 0))
DMA = os.environ.get("DMA", "ogd")
DNT = " nt" if os.environ.get("DNT", "1") == "1" else ""

L_O, L_XN, P_RED, L_QS, L_QL, L_ML, L_FLG, L_ACT = 0, 8192, 12288, 14336, 14464, 15488, 15744, 16128
L_RED, L_HB, L_FIN = 0, 4096, 0
L_FREE = L_FLG + 96
L_RING = 16384
NSL = 9
WS0 = 64 % NSL
L_W1 = L_RING + WS0*16384
L_W2, L_W3 = L_W1 + 16384, L_W1 + 32768
WK = int(os.environ.get("WK", 0))
WSL = int(os.environ.get("WSL", 2))
CONT = os.environ.get("CONT", "1") == "1"
L_END = L_RING + NSL*16384
S0 = int(os.environ.get("S0", 16))
NOCOMP = os.environ.get("NOCOMP") == "1"
NOSW = os.environ.get("NOSW") == "1"
ROT = int(os.environ.get("ROT", 16))
CPF = os.environ.get("CPF", "1") == "1"
THR = int(os.environ.get("THR", 14))
WTHR = int(os.environ.get("WTHR", 28))
HALF = os.environ.get("HALF", "0") == "1"
LAG = int(os.environ.get("LAG", 3))
LA = int(os.environ.get("LA", 8))
CMIN = int(os.environ.get("CMIN", 2))
QS = os.environ.get("QS", "1") == "1"
NPRE = int(os.environ.get("NPRE", 6))
L_PROG, L_CLM = L_FLG + 136, L_FLG + 160
L_XCNT, L_QF, L_QCNT, L_STC = L_FLG + 72, L_FLG + 76, L_FLG + 80, L_FLG + 84
DYN = False
XMAP = os.environ.get("XMAP", "1") == "1"

sK, sV, sWS, sX, sW1, sW2, sW3, sOUT, sDBG, sWQ = 16, 20, 24, 28, 32, 36, 40, 44, 48, 52
sSC, sL2 = 98, 99
sN, sBASE, sC = 96, 97, 6

vQ = 8; vA = 24; vS = 56; vP = 64; vKD = 68; vVD = 100; vKA = 132; vVA = 136; vM = 144; vDK = 152; vDV = 156; vT = 158; vF = 160
NV = 164
vST = NV

def srd(a, d, ptr, nbytes):
    a(f"s_mov_b32 s{d}, s{ptr}")
    a(f"s_and_b32 s{d+1}, s{ptr+1}, 0xffff")
    a(f"s_mov_b32 s{d+2}, {nbytes}")
    a(f"s_mov_b32 s{d+3}, 0x00020000")

def wave_allreduce(a, v, t, op):
    for ctl in ("quad_perm:[1,0,3,2]", "quad_perm:[2,3,0,1]", "row_half_mirror", "row_mirror"):
        a(f"v_{op}_f32_dpp v{v}, v{v}, v{v} {ctl} row_mask:0xf bank_mask:0xf")
    a(f"v_mov_b32 v{t}, v{v}")
    a(f"v_permlane16_swap_b32 v{v}, v{t}")
    a(f"v_{op}_f32 v{v}, v{v}, v{t}")
    a(f"v_mov_b32 v{t}, v{v}")
    a(f"v_permlane32_swap_b32 v{v}, v{t}")
    a(f"v_{op}_f32 v{v}, v{v}, v{t}")

def rbf(a, v):
    a(f"v_cvt_pk_bf16_f32 v{v}, v{v}, v{v}")
    a(f"v_lshlrev_b32 v{v}, 16, v{v}")

def layernorm(a, src, f, t):
    for i in range(4):
        a(f"v_lshlrev_b32 v{f+2*i}, 16, v{src+i}")
        a(f"v_and_b32 v{f+2*i+1}, 0xffff0000, v{src+i}")
    a(f"v_add_f32 v{t}, v{f}, v{f+1}")
    for i in range(2, 8):
        a(f"v_add_f32 v{t}, v{t}, v{f+i}")
    wave_allreduce(a, t, t+1, "add")
    a(f"v_mul_f32 v{t}, 0x3b000000, v{t}")
    a(f"v_sub_f32 v{t+1}, v{f}, v{t}")
    a(f"v_mul_f32 v{t+2}, v{t+1}, v{t+1}")
    for i in range(1, 8):
        a(f"v_sub_f32 v{t+1}, v{f+i}, v{t}")
        a(f"v_fmac_f32 v{t+2}, v{t+1}, v{t+1}")
    wave_allreduce(a, t+2, t+1, "add")
    a(f"v_mul_f32 v{t+2}, 0x3b000000, v{t+2}")
    rbf(a, t)
    rbf(a, t+2)
    a(f"v_add_f32 v{t+2}, {EPS:#x}, v{t+2}")
    rbf(a, t+2)
    a(f"v_sqrt_f32 v{t+2}, v{t+2}")
    rbf(a, t+2)
    a(f"v_rcp_f32 v{t+3}, v{t+2}")
    for i in range(8):
        a(f"v_sub_f32 v{f+i}, v{f+i}, v{t}")
        rbf(a, f+i)
        a(f"v_mul_f32 v{t+4}, v{f+i}, v{t+3}")
        a(f"v_fma_f32 v{t+5}, -v{t+4}, v{t+2}, v{f+i}")
        a(f"v_fma_f32 v{f+i}, v{t+5}, v{t+3}, v{t+4}")
    for i in range(4):
        a(f"v_cvt_pk_bf16_f32 v{src+i}, v{f+2*i}, v{f+2*i+1}")

def gemv_wave(a, vD, vWaddr, vAaddr, vt, woff=0, rowb=32):
    for ks in range(2):
        a(f"ds_read_b64_tr_b16 v[{vt+8*ks}:{vt+8*ks+1}], v{vWaddr} offset:{woff + ks*32*rowb}")
        a(f"ds_read_b64_tr_b16 v[{vt+8*ks+2}:{vt+8*ks+3}], v{vWaddr} offset:{woff + ks*32*rowb + 4*rowb}")
        a(f"ds_read_b128 v[{vt+8*ks+4}:{vt+8*ks+7}], v{vAaddr} offset:{ks*64}")
    a("s_waitcnt lgkmcnt(0)")
    a(f"v_mfma_f32_16x16x32_bf16 v[{vD}:{vD+3}], v[{vt}:{vt+3}], v[{vt+4}:{vt+7}], 0")
    a(f"v_mfma_f32_16x16x32_bf16 v[{vD}:{vD+3}], v[{vt+8}:{vt+11}], v[{vt+12}:{vt+15}], v[{vD}:{vD+3}]")

def gemv_addr(a, vW, vA, wbase, abase, rowsh=5):
    a(f"v_lshrrev_b32 v4, 2, v2")
    a(f"v_lshl_add_u32 v4, v3, 3, v4")
    a(f"v_lshlrev_b32 v4, {rowsh}, v4")
    a(f"v_and_b32 v5, 3, v2")
    a(f"v_lshl_add_u32 v4, v5, 3, v4")
    a(f"s_lshl_b32 s56, s3, {6+rowsh}")
    a(f"s_add_u32 s56, s56, {wbase}")
    a(f"v_add_u32 v{vW}, s56, v4")
    a(f"v_lshlrev_b32 v4, 10, v5")
    a(f"v_lshl_add_u32 v4, v3, 4, v4")
    a(f"s_lshl_b32 s56, s3, 7")
    a(f"s_add_u32 s56, s56, {abase}")
    a(f"v_add_u32 v{vA}, s56, v4")

stamp_n = [0]
def stamp(a, n=None):
    if not STAMP: return
    if n is None:
        n = stamp_n[0]; stamp_n[0] += 1
    a("s_memrealtime s[100:101]")
    a("s_waitcnt lgkmcnt(0)")
    a(f"v_writelane_b32 v{vST}, s100, {n}")

def lstamp(a, n):
    if not STAMP: return
    a("s_memrealtime s[100:101]")
    a("s_waitcnt lgkmcnt(0)")
    a(f"v_writelane_b32 v{vST}, s100, {n}")

def sent_check(a, regs, vt):
    regs = list(regs)
    a(f"v_max_u32 v{vt}, v{regs[0]}, v{regs[1]}")
    rest = regs[2:]
    while len(rest) >= 2:
        a(f"v_max3_u32 v{vt}, v{rest[0]}, v{rest[1]}, v{vt}"); rest = rest[2:]
    if rest:
        a(f"v_max_u32 v{vt}, v{rest[0]}, v{vt}")
    a(f"v_cmp_eq_u32 vcc, -1, v{vt}")

def poll_tail(a, lab, sleep=1):
    a("s_cmp_eq_u64 vcc, 0")
    a(f"s_cbranch_scc1 {lab}_done")
    a(f"s_sleep {sleep}")
    a("s_add_u32 s62, s62, 1")
    a(f"s_cmp_lt_u32 s62, {SPIN}")
    a(f"s_cbranch_scc1 {lab}")
    a(f"{lab}_done:")

CSH = int(os.environ.get("CSH", 5))
PRE = int(os.environ.get("PRE", 1))
def load_counters(a):
    if CSH == 2:
        a("s_load_dwordx8 s[64:71], s[4:5], 0 glc")
    else:
        for k in range(8):
            a(f"s_load_dword s{64+k}, s[4:5], {k << CSH} glc")

def main():
    a = Asm()
    name = NAME + "_kernel"
    a.raw(".text"); a.raw(f".globl {name}"); a.raw(".p2align 8"); a.raw(f".type {name},@function"); a.raw(f"{name}:")
    a("s_cmp_ge_u32 s2, 256")
    a("s_cbranch_scc1 L_end")
    a("s_load_dwordx16 s[64:79], s[0:1], 0")
    a("s_load_dwordx8 s[80:87], s[0:1], 64")
    if STAMP:
        a(f"v_mov_b32 v{vST}, 0")
    a("v_and_b32 v1, 63, v0")
    a("v_lshrrev_b32 v2, 6, v0")
    a("v_readfirstlane_b32 s3, v2")
    if CPF:
        a("s_cmp_lg_u32 s3, 3"); a("s_cbranch_scc1 L_nocpf")
        a("s_getpc_b64 s[58:59]")
        a.raw("L_pc0:")
        a("v_lshlrev_b32 v4, 7, v1")
        for i in range(3):
            a(f"v_min_u32 v5, L_end-L_pc0, v4")
            a(f"global_load_dword v{20+i}, v5, s[58:59]")
            a("v_add_u32 v4, 0x2000, v4")
        a("L_nocpf:")
    a("v_and_b32 v2, 15, v1")
    a("v_lshrrev_b32 v3, 4, v1")
    a("s_lshr_b32 s11, s2, 3")
    a("s_and_b32 s12, s11, 3")
    a("s_lshr_b32 s13, s11, 2")
    if XMAP:
        a("s_add_u32 s10, s2, s13"); a("s_and_b32 s10, s10, 7")
        a("s_lshl_b32 s2, s11, 3"); a("s_or_b32 s2, s2, s10")
    else:
        a("s_and_b32 s10, s2, 7")
    a("s_lshl_b32 s7, s12, 3")
    a("s_add_u32 s7, s7, s10")
    a("s_lshl_b32 s7, s7, 22")
    if os.environ.get("MAPMB"):
        a("s_lshl_b32 s7, s11, 22"); a("s_and_b32 s13, s2, 7")
    a(f"s_mov_b32 s{sSC}, {SCALE:#x}"); a(f"s_mov_b32 s{sL2}, {LOG2E:#x}")
    a("s_lshl_b32 s14, s10, 2"); a("s_add_u32 s14, s14, s12"); a("s_lshl_b32 s14, s14, 3"); a("s_add_u32 s14, s14, s13")
    a("s_mul_i32 s15, s10, 14"); a("s_add_u32 s15, s15, s11"); a("s_sub_u32 s15, s15, 16")
    a("s_sub_u32 s56, s11, 30"); a("s_lshl_b32 s56, s56, 3"); a("s_add_u32 s56, s56, s10")
    a("s_cmp_ge_u32 s11, 30"); a("s_cselect_b32 s15, s56, s15")
    a("v_lshlrev_b32 v6, 4, v1")
    a(f"s_sub_u32 s{sC}, s3, 4")
    a(f"s_lshl_b32 s{sBASE}, s{sC}, 14"); a(f"s_add_u32 s{sBASE}, s{sBASE}, {L_RING}")
    a("s_waitcnt lgkmcnt(0)")
    srd(a, sWS, 86, WS_SIZE)
    a("s_cmp_lg_u32 s3, 0")
    a("s_cbranch_scc1 L_nw0")
    a("v_lshrrev_b32 v4, 1, v1")
    a("v_lshlrev_b32 v4, 13, v4")
    a("v_and_b32 v5, 1, v1")
    a("v_lshl_add_u32 v4, v5, 4, v4")
    a("s_lshl_b32 s56, s10, 10"); a("s_lshl_b32 s57, s11, 5"); a("s_add_u32 s56, s56, s57")
    srd(a, sWQ, 70, 512*8192)
    for m in range(16):
        a(f"buffer_load_dwordx4 v[{28+4*m}:{31+4*m}], v4, s[{sWQ}:{sWQ+3}], s56 offen")
        if m < 15 and not os.environ.get("NOWQ"): a(f"s_add_u32 s56, s56, {32*8192}")
    for i in range(4): a(f"v_mov_b32 v{12+i}, -1")
    a("s_lshl_b32 s56, s14, 11"); a(f"s_add_u32 s56, s56, {WS_PO}")
    a(f"buffer_store_dwordx4 v[12:15], v6, s[{sWS}:{sWS+3}], s56 offen sc1")
    a(f"buffer_store_dwordx4 v[12:15], v6, s[{sWS}:{sWS+3}], s56 offen offset:1024 sc1")
    a("v_lshrrev_b32 v4, 3, v1"); a("v_lshlrev_b32 v4, 11, v4")
    a("v_and_b32 v5, 7, v1"); a("v_lshl_add_u32 v4, v5, 4, v4")
    a("s_lshl_b32 s56, s10, 13"); a("s_lshl_b32 s57, s11, 7"); a("s_add_u32 s56, s56, s57"); a(f"s_add_u32 s56, s56, {WS_AO}")
    a("v_add_u32 v4, s56, v4")
    a("s_lshl_b32 s56, s14, 5"); a(f"s_add_u32 s56, s56, {WS_ML - 512}")
    a("v_add_u32 v5, s56, v6")
    a("v_cmp_gt_u32 vcc, 32, v1")
    a("v_cndmask_b32 v4, v5, v4, vcc")
    a("s_lshl_b32 s56, s2, 7"); a(f"s_add_u32 s56, s56, {WS_MB}")
    a("v_mov_b32 v5, s56")
    a("v_cmp_eq_u32 vcc, 34, v1")
    a("v_cndmask_b32 v4, v4, v5, vcc")
    a("s_lshr_b32 s56, s14, 3"); a("s_lshl_b32 s56, s56, 7"); a(f"s_add_u32 s56, s56, {WS_CT}")
    a("v_mov_b32 v5, s56")
    a("v_cmp_eq_u32 vcc, 35, v1")
    a("v_cndmask_b32 v4, v4, v5, vcc")
    a(f"v_mov_b32 v5, {8*S0}")
    a("v_cndmask_b32 v8, v12, v5, vcc")
    for i in range(1, 4): a(f"v_mov_b32 v{8+i}, -1")
    a("s_cmp_eq_u32 s13, 0"); a("s_cselect_b32 s61, 15, 7")
    a("s_cmp_lt_u32 s11, 16"); a("s_cselect_b32 s60, -1, 0")
    a("s_mov_b64 exec, s[60:61]")
    a(f"buffer_store_dwordx4 v[8:11], v4, s[{sWS}:{sWS+3}], 0 offen sc1")
    a("s_mov_b64 exec, -1")
    a("s_lshl_b32 s56, s15, 13"); a(f"s_add_u32 s56, s56, {WS_DP}")
    a("s_mov_b32 s57, 0")
    a("s_cmp_lt_u32 s11, 16"); a(f"s_cselect_b32 s57, {WS_SIZE}, s57"); a("s_cselect_b32 s56, 0, s56")
    a("s_cmp_ge_u32 s11, 30"); a(f"s_cselect_b32 s57, {WS_SIZE}, s57"); a("s_cselect_b32 s56, 0, s56")
    a("v_add_u32 v7, s57, v6")
    for c in range(8):
        if c == 4: a("s_add_u32 s56, s56, 4096")
        a(f"buffer_store_dwordx4 v[12:15], v7, s[{sWS}:{sWS+3}], s56 offen offset:{1024*(c%4)} sc1")
    a("s_branch L_b0")
    a("L_nw0:")
    srd(a, sX, 64, 4096)
    a("s_and_b32 s63, s3, 3"); a("s_lshl_b32 s63, s63, 10")
    a("s_lshr_b32 s56, s3, 2"); a("s_cmp_lg_u32 s56, 1"); a("s_cbranch_scc1 L_nox")
    a(f"buffer_load_dwordx4 v[24:27], v6, s[{sX}:{sX+3}], s63 offen")
    a("L_nox:")
    a("s_cmp_lg_u32 s3, 1"); a("s_cbranch_scc1 L_b0")
    a("v_and_b32 v4, 1, v1")
    a("v_cmp_eq_u32 vcc, 1, v4")
    a(f"v_cmp_gt_u32 s[58:59], {2*NSL}, v1")
    a("s_and_b64 vcc, vcc, s[58:59]")
    a("v_mov_b32 v4, 0"); a("v_mov_b32 v5, 0x7fffffff")
    a("v_cndmask_b32 v4, v4, v5, vcc")
    a("v_subrev_u32 v5, 32, v1")
    a("v_cmp_lt_u32 vcc, -9, v5")
    a("v_cndmask_b32 v4, v4, v5, vcc")
    a("v_lshlrev_b32 v5, 2, v1")
    a(f"ds_write_b32 v5, v4 offset:{L_FLG}")
    a("s_waitcnt lgkmcnt(0)")
    a("L_b0:")
    srd(a, sX, 64, 4096)
    a(f"s_add_u32 s{sK}, s66, s7"); a(f"s_addc_u32 s{sK+1}, s67, 0"); a(f"s_and_b32 s{sK+1}, s{sK+1}, 0xffff")
    a(f"s_mov_b32 s{sK+2}, 0x400000"); a(f"s_mov_b32 s{sK+3}, 0x00020000")
    a(f"s_add_u32 s{sV}, s68, s7"); a(f"s_addc_u32 s{sV+1}, s69, 0"); a(f"s_and_b32 s{sV+1}, s{sV+1}, 0xffff")
    a(f"s_mov_b32 s{sV+2}, 0x400000"); a(f"s_mov_b32 s{sV+3}, 0x00020000")
    srd(a, sW1, 72, 4096*1024)
    srd(a, sW2, 78, 512*3584)
    srd(a, sW3, 80, 1792*1024)
    srd(a, sOUT, 82, 4096)
    a("s_mov_b32 s4, s84"); a("s_mov_b32 s5, s85")
    a("s_mov_b32 s8, s86"); a("s_mov_b32 s9, s87")
    a("s_cmp_lt_u32 s11, 16")
    a("s_cbranch_scc1 L_p1")
    srd(a, sW1, 76, 512*3584)
    a("L_p1:")
    a("v_mov_b32 v9, 0")
    stamp(a)
    a("s_barrier")
    a("s_cmp_eq_u32 s3, 8"); a("s_cbranch_scc1 L_loader")
    a("s_cmp_eq_u32 s3, 0"); a("s_cbranch_scc1 L_w0q")
    a("s_cmp_lt_u32 s3, 4"); a("s_cbranch_scc1 L_qwait")

    def lds_wait(tag, off, val, sleep=1):
        a("s_mov_b32 s62, 0")
        a(f"L_lw{tag}:")
        a(f"ds_read_b32 v10, v9 offset:{off}")
        a("s_waitcnt lgkmcnt(0)")
        a("v_readfirstlane_b32 s56, v10")
        a(f"s_cmp_eq_u32 s56, {val}")
        a(f"s_cbranch_scc1 L_lwd{tag}")
        a(f"s_sleep {sleep}")
        a("s_add_u32 s62, s62, 1")
        a(f"s_cmp_lt_u32 s62, {SPIN*16}")
        a(f"s_cbranch_scc1 L_lw{tag}")
        a(f"L_lwd{tag}:")
    def lds_inc(off):
        a("v_mov_b32 v10, 1")
        a("s_mov_b64 exec, 1")
        a(f"ds_add_u32 v9, v10 offset:{off}")
        a("s_mov_b64 exec, -1")

    a("s_waitcnt vmcnt(0)")
    layernorm(a, 24, 28, 36)
    a("v_add_u32 v4, s63, v6")
    a(f"ds_write_b128 v4, v[24:27] offset:{L_XN}")
    lds_inc(L_XCNT)
    a("v_lshrrev_b32 v4, 2, v2")
    a("v_and_b32 v5, 3, v2")
    a("v_lshl_add_u32 v6, v4, 3, v5")
    a("v_lshlrev_b32 v6, 8, v6")
    a("v_xor_b32 v7, v2, v3")
    a("v_lshl_add_u32 v6, v7, 4, v6")
    a(f"v_add_u32 v{vKA}, s{sBASE}, v6")
    for t in range(1, 4):
        a(f"v_xor_b32 v{vKA+t}, {t<<6:#x}, v{vKA}")
    a("v_lshl_add_u32 v6, v3, 3, v4")
    a("v_lshlrev_b32 v6, 8, v6")
    a("v_and_b32 v7, 1, v3")
    a("v_lshl_add_u32 v7, v7, 2, v4")
    a("v_lshl_add_u32 v6, v7, 5, v6")
    a("v_lshl_add_u32 v6, v5, 3, v6")
    a(f"v_add_u32 v{vVA}, s{sBASE}, v6")
    for T in range(1, 8):
        a(f"v_xor_b32 v{vVA+T}, {T<<5:#x}, v{vVA}")
    for r in range(32): a(f"v_mov_b32 v{vA+r}, 0")
    a(f"v_mov_b32 v{vM}, 0xff7fffff")
    a(f"v_mov_b32 v{vM+2}, 0")
    a(f"v_mov_b32 v{vM+4}, 0")
    if os.environ.get("NOQ"): a("s_branch L_lwdc")
    a("s_branch L_qwait")

    a("L_w0q:")
    gemv_addr(a, 16, 17, L_O, L_XN)
    a("s_lshl_b32 s60, s10, 10"); a("s_lshl_b32 s57, s11, 5"); a("s_add_u32 s60, s60, s57")
    a(f"s_lshl_b32 s61, s10, {CSH}")
    a("s_waitcnt vmcnt(19)")
    for m in range(8):
        a(f"ds_write_b128 v6, v[{28+4*m}:{31+4*m}] offset:{L_O + 1024*m}")
    lds_wait("x", L_XCNT, 4)
    stamp(a, 13)
    for half in range(2):
        if half == 1:
            a("s_waitcnt vmcnt(11)")
            for m in range(8):
                a(f"ds_write_b128 v6, v[{60+4*m}:{63+4*m}] offset:{L_O + 1024*m}")
        for bt in range(2):
            for k4 in range(4):
                ks = 4*bt + k4
                r = 92 + 8*k4
                a(f"ds_read_b64_tr_b16 v[{r}:{r+1}], v16 offset:{ks*1024}")
                a(f"ds_read_b64_tr_b16 v[{r+2}:{r+3}], v16 offset:{ks*1024 + 128}")
                a(f"ds_read_b128 v[{r+4}:{r+7}], v17 offset:{(half*8 + ks)*64}")
            for k4 in range(4):
                r = 92 + 8*k4
                a(f"s_waitcnt lgkmcnt({9 - 3*k4})")
                c = "0" if (half == 0 and bt == 0 and k4 == 0) else "v[20:23]"
                a(f"v_mfma_f32_16x16x32_bf16 v[20:23], v[{r}:{r+3}], v[{r+4}:{r+7}], {c}")
    a("v_cvt_pk_bf16_f32 v20, v20, v21")
    a("v_cvt_pk_bf16_f32 v21, v22, v23")
    for k in range(16):
        bb, g = k // 4, k % 4
        a(f"v_readlane_b32 s{64+2*k}, v20, {16*g + bb}")
        a(f"v_readlane_b32 s{65+2*k}, v21, {16*g + bb}")
        if not os.environ.get("KA"): a(f"s_atomic_swap_x2 s[{64+2*k}:{65+2*k}], s[8:9], s60 offset:{bb*8192 + g*8} glc")
    a("s_mov_b32 s62, 1")
    a("s_waitcnt vmcnt(0) lgkmcnt(0)")
    stamp(a, 10)
    a("s_atomic_add s62, s[4:5], s61 glc")
    a("s_waitcnt lgkmcnt(0)")
    stamp(a, 11)
    a("s_cmp_lg_u32 s62, 31")
    a("s_cbranch_scc1 L_notlast")
    a("s_lshl_b32 s56, s10, 7"); a(f"s_add_u32 s56, s56, {WS_MB}")
    a("s_mov_b32 s62, 2")
    for i in range(32):
        if not os.environ.get("KE"): a(f"s_atomic_add s62, s[8:9], s56 offset:{1024*i}")
    a("s_mov_b32 s62, 1")
    a("s_atomic_add s62, s[4:5], 240 glc")
    a("s_waitcnt lgkmcnt(0)")
    a("s_cmp_lg_u32 s62, 7")
    a("s_cbranch_scc1 L_notlast")
    a("s_mov_b32 s62, 2")
    a(f"s_mov_b32 s56, {WS_MB + 128*128 + 4}")
    a("L_allc:")
    for i in range(8):
        a(f"s_atomic_add s62, s[8:9], s56 offset:{128*i}")
    a("s_add_u32 s56, s56, 1024")
    a(f"s_cmp_lt_u32 s56, {WS_MB + 256*128}")
    a("s_cbranch_scc1 L_allc")
    a("L_notlast:")
    a("s_lshl_b32 s63, s2, 7"); a(f"s_add_u32 s63, s63, {WS_MB}")
    a("s_mov_b32 s62, 0")
    if os.environ.get("KB"): a("s_branch L_qgot")
    a("L_qpoll:")
    a("s_load_dword s56, s[8:9], s63 glc")
    a("s_waitcnt lgkmcnt(0)")
    a("s_cmp_eq_u32 s56, 1")
    a("s_cbranch_scc1 L_qgot")
    a("s_sleep 1")
    a("s_add_u32 s62, s62, 1")
    a(f"s_cmp_lt_u32 s62, {SPIN}")
    a("s_cbranch_scc1 L_qpoll")
    a("L_qgot:")
    lds_inc(L_QF)
    stamp(a, 12)
    a("s_branch L_qf")
    a("L_qwait:")
    lds_wait("q", L_QF, 1)
    a("L_qf:")
    stamp(a)
    a("s_lshl_b32 s56, s12, 13"); a("s_lshl_b32 s57, s10, 10"); a("s_add_u32 s56, s56, s57")
    a("s_lshl_b32 s57, s3, 7"); a("s_add_u32 s56, s56, s57")
    a("s_add_u32 s57, s56, 64")
    if not os.environ.get("KC"):
        a("s_load_dwordx16 s[64:79], s[8:9], s56 glc")
        a("s_load_dwordx16 s[80:95], s[8:9], s57 glc")
    a("s_lshl_b32 s56, s3, 7"); a(f"s_add_u32 s56, s56, {L_QL}")
    a("v_lshlrev_b32 v4, 2, v1")
    a("v_add_u32 v4, s56, v4")
    a("s_waitcnt lgkmcnt(0)")
    for i in range(32):
        a(f"v_writelane_b32 v5, s{64+i}, {i}")
    a("s_mov_b32 exec_lo, -1"); a("s_mov_b32 exec_hi, 0")
    a("ds_write_b32 v4, v5")
    a("s_mov_b64 exec, -1")
    lds_inc(L_QCNT)
    stamp(a)
    a("s_cmp_ge_u32 s3, 4"); a("s_cbranch_scc1 L_cons")
    if DYN: a("s_cmp_eq_u32 s3, 2"); a("s_cbranch_scc1 L_claimer")
    a("s_cmp_eq_u32 s3, 3"); a("s_cbranch_scc1 L_wts")
    a("s_cmp_lg_u32 s3, 0"); a("s_cbranch_scc1 L_epi")
    a("s_cmp_lt_u32 s11, 16"); a("s_cbranch_scc1 L_epi")
    if os.environ.get("KD"): a("s_branch L_epi")
    a("s_mov_b32 s62, 0")
    a("s_lshl_b32 s63, s2, 7"); a(f"s_add_u32 s63, s63, {WS_MB + 4}")
    a("L_cnt:")
    a("s_load_dword s56, s[8:9], s63 glc")
    a("s_waitcnt lgkmcnt(0)")
    a("s_cmp_eq_u32 s56, 1")
    a("s_cbranch_scc1 L_epi")
    a("L_cnt_retry:")
    a("s_sleep 32")
    a("s_add_u32 s62, s62, 1")
    a(f"s_cmp_lt_u32 s62, {SPIN}")
    a("s_cbranch_scc1 L_cnt")
    a("s_branch L_epi")

    a("L_wts:")
    a("s_cmp_ge_u32 s11, 30"); a("s_cbranch_scc1 L_epi")
    if os.environ.get("NODMA"): a("s_branch L_epi")
    PLW = 2 if THR < 16 else 3
    NPUB = 64 - PLW + 1 - WK
    a("s_mov_b32 s62, 0")
    a("L_wtp:")
    a(f"ds_read_b32 v10, v9 offset:{L_FLG + 8*((NPUB-1) % NSL)}")
    a("s_waitcnt lgkmcnt(0)")
    a("v_readfirstlane_b32 s56, v10")
    a(f"s_cmp_ge_u32 s56, {NPUB}")
    a("s_cbranch_scc1 L_wtg")
    a(f"s_sleep {WSL}")
    a("s_add_u32 s62, s62, 1")
    a(f"s_cmp_lt_u32 s62, {SPIN*16}")
    a("s_cbranch_scc1 L_wtp")
    a("L_wtg:")
    a("s_cmp_ge_u32 s11, 16"); a("s_cbranch_scc1 L_wf")
    a("v_lshrrev_b32 v4, 2, v1")
    a("v_lshlrev_b32 v4, 10, v4")
    a("v_and_b32 v5, 3, v1")
    a("v_lshl_add_u32 v4, v5, 4, v4")
    a("s_lshl_b32 s60, s10, 19"); a("s_lshl_b32 s57, s11, 6"); a("s_add_u32 s60, s60, s57")
    for c in range(2):
        lds_wait(f"wo{c}", L_FREE + 4*(WS0 + c), 64 + c - (NSL - 1))
        a(f"s_mov_b32 s57, {L_W1 + 16384*c}")
        a(f"LN_wo{c}:")
        for n in range(4):
            a("s_mov_b32 m0, s57")
            a(f"buffer_load_dwordx4 v4, s[{sW1}:{sW1+3}], s60 offen{DNT} lds")
            a("s_add_u32 s60, s60, 16384"); a("s_add_u32 s57, s57, 1024")
        a(f"s_cmp_lt_u32 s57, {L_W1 + 16384*(c+1)}")
        a(f"s_cbranch_scc1 LN_wo{c}")
    a("s_branch L_epi1")
    a("L_wf:")
    a("v_lshrrev_b32 v4, 1, v1")
    a("s_movk_i32 s56, 3584")
    a("v_mul_lo_u32 v4, v4, s56")
    a("v_and_b32 v5, 1, v1")
    a("v_lshl_add_u32 v4, v5, 4, v4")
    a("v_lshlrev_b32 v6, 4, v1")
    for c in range(3):
        lds_wait(f"wf{c}", L_FREE + 4*(WS0 + c), 64 + c - (NSL - 1))
        a(f"s_lshl_b32 s60, s15, {5 if c < 2 else 14}")
        a(f"s_mov_b32 s57, {L_W1 + 16384*c}")
        a(f"LN_wf{c}:")
        for n in range(4):
            a("s_mov_b32 m0, s57")
            a(f"buffer_load_dwordx4 v{4 if c < 2 else 6}, s[{sW1+4*c}:{sW1+4*c+3}], s60 offen{DNT} lds")
            a(f"s_add_u32 s60, s60, {32*3584 if c < 2 else 1024}"); a("s_add_u32 s57, s57, 1024")
        a(f"s_cmp_lt_u32 s57, {L_W1 + 16384*(c+1)}")
        a(f"s_cbranch_scc1 LN_wf{c}")
    a("s_branch L_epi1")

    sI, sIDX, sCTO = 64, 65, 66
    if DYN:
        a("L_claimer:")
        a(f"s_lshr_b32 s{sCTO}, s14, 3"); a(f"s_lshl_b32 s{sCTO}, s{sCTO}, 7"); a(f"s_add_u32 s{sCTO}, s{sCTO}, {WS_CT}")
        a(f"s_mov_b32 s{sI}, {S0}")
        a("v_mov_b32 v9, 0")
        a("s_mov_b32 s68, 0")
        a("L_cl:")
        a(f"ds_read_b32 v10, v9 offset:{L_PROG}")
        a("s_waitcnt lgkmcnt(0)")
        a("v_readfirstlane_b32 s56, v10")
        a(f"s_add_u32 s56, s56, {LA}")
        a(f"s_sub_i32 s63, s56, s{sI}")
        a(f"s_cmp_ge_i32 s63, {CMIN}")
        a("s_cbranch_scc1 L_clgo")
        a("s_sleep 2")
        a("s_add_u32 s68, s68, 1")
        a(f"s_cmp_lt_u32 s68, {SPIN*16}")
        a("s_cbranch_scc1 L_cl")
        a("s_branch L_epi")
        a("L_clgo:")
        a("s_mov_b32 s62, s63")
        a(f"s_atomic_add s62, s[8:9], s{sCTO} glc")
        a(f"v_add_u32 v12, s{sI}, v1")
        a("v_and_b32 v11, 15, v12")
        a("v_lshlrev_b32 v11, 2, v11")
        a("v_lshlrev_b32 v12, 16, v12")
        a("v_add_u32 v12, v12, v1")
        a("s_lshl_b32 s56, 1, s63"); a("s_sub_u32 s56, s56, 1"); a("s_mov_b32 s57, 0")
        a("s_waitcnt lgkmcnt(0)")
        a("s_min_u32 s62, s62, 0x8000")
        a("v_add_u32 v12, s62, v12")
        a("s_mov_b64 exec, s[56:57]")
        a(f"ds_write_b32 v11, v12 offset:{L_CLM}")
        a("s_mov_b64 exec, -1")
        a(f"s_add_u32 s{sI}, s{sI}, s63")
        a("s_add_u32 s62, s62, s63")
        a("s_cmp_le_u32 s62, 512")
        a("s_cbranch_scc1 L_cl")
        a("s_branch L_epi")

    a("L_loader:")
    if not os.environ.get("NOPRIO"): a("s_setprio 3")
    a("v_xor_b32 v7, v2, v3")
    a("v_lshlrev_b32 v5, 8, v3")
    a(f"v_lshl_add_u32 v{vDK}, v7, 4, v5")
    for u in range(1, 4):
        a(f"v_xor_b32 v{vDK+u}, {u<<6:#x}, v{vDK}")
    a("v_lshlrev_b32 v4, 1, v3")
    a("v_xor_b32 v4, v2, v4")
    a(f"v_lshl_add_u32 v{vDV}, v4, 4, v5")
    a(f"v_xor_b32 v{vDV+1}, 0x80, v{vDV}")
    if NOSW:
        for r in range(6): a(f"v_mov_b32 v{vDK+r}, v6")
    a(f"s_lshr_b32 s70, s14, 3"); a(f"s_mul_i32 s70, s70, {ROT}")
    PL = 2 if THR < 16 else 3
    sSL, sPS, sFE = 71, 72, 73
    def pub(sval):
        a(f"v_mov_b32 v10, {sval}")
        a(f"v_mov_b32 v13, s{sPS}")
        a("s_mov_b64 exec, 1")
        a(f"ds_write_b32 v13, v10 offset:{L_FLG}")
        a("s_mov_b64 exec, -1")
        a(f"s_add_u32 s{sPS}, s{sPS}, 8")
        a(f"s_cmp_eq_u32 s{sPS}, {8*NSL}")
        a(f"s_cselect_b32 s{sPS}, 0, s{sPS}")
    def fetch_flags():
        a(f"v_mov_b32 v11, s{sFE}")
        a(f"ds_read_b32 v14, v11 offset:{L_FREE}")
        if DYN:
            a(f"s_and_b32 s56, s{sI}, 15"); a("s_lshl_b32 s56, s56, 2")
            a("v_mov_b32 v12, s56")
            a(f"ds_read_b32 v15, v12 offset:{L_CLM}")
    a(f"s_lshl_b32 s{sIDX}, s13, 6" if CONT else f"s_mov_b32 s{sIDX}, s13")
    a(f"s_mov_b32 s{sI}, 0"); a(f"s_mov_b32 s{sSL}, {L_RING}"); a(f"s_mov_b32 s{sPS}, 0"); a(f"s_mov_b32 s{sFE}, 0")
    a("s_mov_b32 s69, 0"); a("s_mov_b32 s74, 0"); a("v_mov_b32 v20, 0")
    lstamp(a, 1)
    fetch_flags()
    a("LN_ld:")
    a(f"s_sub_u32 s67, s{sI}, {NSL-1}")
    a("s_waitcnt lgkmcnt(0)")
    a("v_readfirstlane_b32 s56, v14")
    if STAMP:
        a(f"s_sub_u32 s76, s{sI}, 1"); a("s_and_b32 m0, s76, 63")
        a("v_writelane_b32 v20, s74, m0")
    if DYN:
        a("v_readfirstlane_b32 s57, v15")
        a(f"s_cmp_lt_u32 s{sI}, {S0}")
        a("s_cbranch_scc1 LN_fs")
        a("s_lshr_b32 s63, s57, 16")
        a(f"s_cmp_lg_u32 s63, s{sI}")
        a("s_cbranch_scc1 LN_fr")
        a(f"s_and_b32 s{sIDX}, s57, 0xffff")
        a("LN_fs:")
    a(f"s_cmp_ge_u32 s{sI}, 64")
    a("s_cbranch_scc1 L_ldend")
    a("s_cmp_eq_u32 s56, s67")
    a("s_cbranch_scc1 LN_fg")
    a("LN_fr:")
    a("s_sleep 1")
    fetch_flags()
    a("s_add_u32 s69, s69, 1")
    a(f"s_cmp_lt_u32 s69, {SPIN*16}")
    a("s_cbranch_scc1 LN_ld")
    a("s_branch L_ldend")
    a("LN_fg:")
    a(f"s_lshl_b32 s56, s{sIDX}, 13")
    a("s_add_u32 s57, s56, 4096")
    a(f"s_waitcnt vmcnt({THR})")
    if STAMP: a("s_memrealtime s[74:75]")
    for kv in range(2):
        if kv == 1 and HALF: a(f"s_waitcnt vmcnt({THR})")
        for h in range(2):
            a(f"s_add_u32 m0, s{sSL}, {kv*8192 + h*4096}")
            for qq in range(4):
                q = 4*h + qq
                vo = vDK + (q >> 1) if kv == 0 else vDV + ((q >> 1) & 1)
                sr = sK if kv == 0 else sV
                a(f"buffer_load_dwordx4 v{vo}, s[{sr}:{sr+3}], s{56+h} offen offset:{1024*qq}{NT} lds")
    a(f"s_add_u32 s{sIDX}, s{sIDX}, {1 if CONT else 8}")
    a(f"s_add_u32 s{sSL}, s{sSL}, 16384"); a(f"s_add_u32 s{sFE}, s{sFE}, 4")
    a(f"s_cmp_eq_u32 s{sFE}, {4*NSL}")
    a(f"s_cselect_b32 s{sFE}, 0, s{sFE}"); a(f"s_cselect_b32 s{sSL}, {L_RING}, s{sSL}")
    a(f"s_cmp_lt_u32 s{sI}, {PL}")
    a("s_cbranch_scc1 LN_np")
    a(f"s_sub_u32 s67, s{sI}, {PL - 1}")
    pub("s67")
    a("LN_np:")
    a(f"s_add_u32 s{sI}, s{sI}, 1")
    if DYN:
        a(f"v_mov_b32 v10, s{sI}")
        a("s_mov_b64 exec, 1")
        a(f"ds_write_b32 v9, v10 offset:{L_PROG}")
        a("s_mov_b64 exec, -1")
    fetch_flags()
    if STAMP:
        a(f"s_cmp_lg_u32 s{sI}, 30"); a("s_cbranch_scc1 LN_nomid")
        lstamp(a, 5)
        a("LN_nomid:")
    if STAMP:
        a(f"s_cmp_lg_u32 s{sI}, 9"); a("s_cbranch_scc1 LN_ld")
        lstamp(a, 2)
    a("s_branch LN_ld")
    a("L_ldend:")
    lstamp(a, 3)
    if STAMP:
        a("v_mov_b32 v10, s69")
        a(f"ds_write_b32 v9, v10 offset:{L_STC}")
    a("v_lshlrev_b32 v11, 3, v1")
    a(f"v_mov_b32 v10, s{sI}")
    a(f"s_mov_b64 exec, {(1<<NSL)-1}")
    a(f"ds_write_b32 v11, v10 offset:{L_FLG + 4}")
    a("s_mov_b64 exec, -1")
    for r in range(PL, 0, -1):
        a(f"s_sub_u32 s67, s{sI}, {r - 1}")
        a(f"s_waitcnt vmcnt({16*(r-1)})")
        pub("s67")
    a("s_waitcnt lgkmcnt(0)")
    if STAMP:
        lstamp(a, 4)
        a("v_lshlrev_b32 v4, 2, v1")
        a("s_lshl_b32 s56, s2, 9"); a(f"s_add_u32 s56, s56, 0x1B0000")
        a(f"buffer_store_dword v20, v4, s[{sWS}:{sWS+3}], s56 offen")
        a("s_lshl_b32 s56, s2, 6"); a(f"s_add_u32 s56, s56, {WS_TS + 0x4000}")
        a("s_mov_b64 exec, 0xffff")
        a(f"buffer_store_dword v{vST}, v4, s[{sWS}:{sWS+3}], s56 offen")
    a("s_endpgm")

    a("L_cons:")
    a("v_and_b32 v7, 3, v2")
    a("v_lshlrev_b32 v7, 8, v7")
    a("v_lshl_add_u32 v7, v3, 4, v7")
    lds_wait("c", L_QCNT, 8)
    for t in range(4):
        a(f"ds_read_b128 v[{vQ+4*t}:{vQ+4*t+3}], v7 offset:{L_QL + 64*t}")
    a(f"s_mov_b32 s{sN}, s{sC}")
    a(f"s_mov_b32 s64, s{sC}")
    a("L_poll:")
    a(f"s_lshl_b32 s56, s64, 3")
    a(f"v_mov_b32 v{vF}, s56")
    a(f"s_add_u32 s65, s{sN}, 1")
    a("s_mov_b32 s62, 0")
    a("L_poll1:")
    a(f"ds_read_b64 v[{vT}:{vT+1}], v{vF} offset:{L_FLG}")
    a("s_waitcnt lgkmcnt(0)")
    a(f"v_readfirstlane_b32 s56, v{vT}")
    a(f"v_readfirstlane_b32 s57, v{vT+1}")
    a("s_cmp_eq_u32 s56, s65")
    a("s_cbranch_scc1 L_go")
    a(f"s_cmp_ge_u32 s{sN}, s57")
    a("s_cbranch_scc1 L_cdone")
    a("s_sleep 1")
    a("s_add_u32 s62, s62, 1")
    a(f"s_cmp_lt_u32 s62, {SPIN*16}")
    a("s_cbranch_scc1 L_poll1")
    a("s_branch L_cdone")
    a("L_go:")
    for tb in range(2):
        for t in range(4):
            r = vKD + 16*tb + 4*t
            if not NOCOMP: a(f"ds_read_b128 v[{r}:{r+3}], v{vKA+t} offset:{1024*tb}")
    for T in range(3):
        for hh in range(2):
            r = vVD + 4*T + 2*hh
            if not NOCOMP: a(f"ds_read_b64_tr_b16 v[{r}:{r+1}], v{vVA+T} offset:{8192 + 1024*hh}")
    a("s_waitcnt lgkmcnt(10)")
    for tb in range(2):
        d = vS + 4*tb
        if tb == 1: a("s_waitcnt lgkmcnt(6)")
        for t in range(4):
            r = vKD + 16*tb + 4*t
            c = "0" if t == 0 else f"v[{d}:{d+3}]"
            a(f"v_mfma_f32_16x16x32_bf16 v[{d}:{d+3}], v[{r}:{r+3}], v[{vQ+4*t}:{vQ+4*t+3}], {c}")
    for T in range(3, 8):
        if T == 7: a("s_waitcnt lgkmcnt(8)")
        for hh in range(2):
            r = vVD + 4*T + 2*hh
            if not NOCOMP: a(f"ds_read_b64_tr_b16 v[{r}:{r+1}], v{vVA+T} offset:{8192 + 1024*hh}")
    a(f"s_lshl_b32 s56, s64, 2")
    a(f"v_mov_b32 v{vF}, s56")
    a(f"s_add_u32 s65, s{sN}, 1")
    a(f"v_mov_b32 v{vF+1}, s65")
    a("s_add_u32 s64, s64, 4")
    a("s_mov_b32 s66, 65536")
    a(f"s_cmp_ge_u32 s64, {NSL}")
    a(f"s_cselect_b32 s66, {65536 - NSL*16384}, s66")
    a(f"s_cselect_b32 s57, {NSL}, 0")
    a("s_sub_u32 s64, s64, s57")
    for p in range(4):
        s0, s1 = vS + 2*p, vS + 2*p + 1
        a(f"v_cvt_pk_bf16_f32 v{vT}, v{s0}, v{s1}")
        a(f"v_lshlrev_b32 v{s0}, 16, v{vT}")
        a(f"v_and_b32 v{s1}, 0xffff0000, v{vT}")
        a(f"v_mul_f32 v{s0}, s{sSC}, v{s0}")
        a(f"v_mul_f32 v{s1}, s{sSC}, v{s1}")
        a(f"v_cvt_pk_bf16_f32 v{vT}, v{s0}, v{s1}")
        a(f"v_lshlrev_b32 v{s0}, 16, v{vT}")
        a(f"v_and_b32 v{s1}, 0xffff0000, v{vT}")
        a(f"v_max3_f32 v{vM+1}, v{s0}, v{s1}, v{vM if p == 0 else vM+1}")
    a(f"v_mov_b32 v{vM+3}, v{vM+1}")
    a(f"v_permlane16_swap_b32 v{vM+1}, v{vM+3}")
    a(f"v_max_f32 v{vM+1}, v{vM+1}, v{vM+3}")
    a(f"v_mov_b32 v{vM+3}, v{vM+1}")
    a(f"v_permlane32_swap_b32 v{vM+1}, v{vM+3}")
    a(f"v_max_f32 v{vM+1}, v{vM+1}, v{vM+3}")
    a("s_waitcnt lgkmcnt(0)")
    a("s_mov_b64 exec, 1")
    a(f"ds_write_b32 v{vF}, v{vF+1} offset:{L_FREE}")
    a("s_mov_b64 exec, -1")
    for r in range(12):
        a(f"v_add_u32 v{vKA+r}, s66, v{vKA+r}")
    a(f"v_cmp_lt_f32 vcc, v{vM}, v{vM+1}")
    a("s_cmp_eq_u64 vcc, 0")
    a("s_cbranch_scc1 L_nores")
    a(f"v_sub_f32 v{vM+3}, v{vM}, v{vM+1}")
    a(f"v_mul_f32 v{vM+3}, s{sL2}, v{vM+3}")
    a(f"v_exp_f32 v{vM+3}, v{vM+3}")
    a(f"v_mov_b32 v{vM}, v{vM+1}")
    a(f"v_mul_f32 v{vM+4}, s{sL2}, v{vM+1}")
    a(f"v_mul_f32 v{vM+2}, v{vM+3}, v{vM+2}")
    for r in range(32):
        a(f"v_mul_f32 v{vA+r}, v{vM+3}, v{vA+r}")
    a("L_nores:")
    for i in range(8):
        s0 = vS + i
        a(f"v_fma_f32 v{s0}, v{s0}, s{sL2}, -v{vM+4}")
        a(f"v_exp_f32 v{s0}, v{s0}")
        a(f"v_add_f32 v{vM+2}, v{vM+2}, v{s0}")
    for p in range(4):
        a(f"v_cvt_pk_bf16_f32 v{vP+p}, v{vS+2*p}, v{vS+2*p+1}")
    for T in range(8):
        acc = vA + 4*T
        a(f"v_mfma_f32_16x16x32_bf16 v[{acc}:{acc+3}], v[{vVD+4*T}:{vVD+4*T+3}], v[{vP}:{vP+3}], v[{acc}:{acc+3}]")
    a(f"s_add_u32 s{sN}, s{sN}, 4")
    a("s_branch L_poll")
    a("L_cdone:")
    a(f"v_mov_b32 v{vM+1}, v{vM+2}")
    a(f"v_permlane16_swap_b32 v{vM+2}, v{vM+1}")
    a(f"v_add_f32 v{vM+2}, v{vM+2}, v{vM+1}")
    a(f"v_mov_b32 v{vM+1}, v{vM+2}")
    a(f"v_permlane32_swap_b32 v{vM+2}, v{vM+1}")
    a(f"v_add_f32 v{vM+1}, v{vM+2}, v{vM+1}")
    a(f"s_lshl_b32 s56, s{sC}, 11")
    a("v_lshlrev_b32 v6, 9, v2")
    a("v_lshl_add_u32 v6, v3, 4, v6")
    a("v_add_u32 v6, s56, v6")
    a(f"s_lshl_b32 s57, s{sC}, 3")
    a("v_lshlrev_b32 v7, 6, v2")
    a("v_add_u32 v7, s57, v7")
    a("v_cmp_gt_u32 vcc, 4, v2")
    a("s_and_saveexec_b64 s[58:59], vcc")
    for e in range(8):
        acc = vA + 4*e
        a(f"ds_write_b128 v6, v[{acc}:{acc+3}] offset:{L_O + e*64}")
    a(f"ds_write_b64 v7, v[{vM}:{vM+1}] offset:{L_ML}")
    a("s_mov_b64 exec, s[58:59]")
    a("L_epi:")
    a("s_waitcnt vmcnt(0)")
    a("L_epi1:")
    a("s_waitcnt lgkmcnt(0)")
    a("s_barrier")
    stamp_n[0] = 4
    stamp(a)
    if STAMP:
        a("v_mov_b32 v6, 0")
        a(f"ds_read_b32 v6, v6 offset:{L_FLG+4}")
        a("s_waitcnt lgkmcnt(0)")
        a("v_readfirstlane_b32 s56, v6")
        a(f"v_writelane_b32 v{vST}, s56, 14")
        a("v_mov_b32 v6, 0")
        a(f"ds_read_b32 v6, v6 offset:{L_STC}")
        a("s_waitcnt lgkmcnt(0)")
        a("v_readfirstlane_b32 s56, v6")
        a(f"v_writelane_b32 v{vST}, s56, 3")
    a("s_cmp_ge_u32 s3, 2")
    a("s_cbranch_scc1 L_role")
    a("v_lshrrev_b32 v6, 5, v0")
    a("v_lshlrev_b32 v8, 6, v6")
    for i in range(2):
        a(f"ds_read_b128 v[{24+4*i}:{24+4*i+3}], v8 offset:{L_ML + 16*i}")
    a("v_lshlrev_b32 v9, 4, v0")
    for w in range(4):
        a(f"ds_read_b128 v[{40+4*w}:{43+4*w}], v9 offset:{L_O + w*2048}")
    a("s_waitcnt lgkmcnt(4)")
    a("v_max_f32 v10, v24, v26")
    a("v_max3_f32 v10, v28, v30, v10")
    a("v_mov_b32 v11, 0")
    for w in range(4):
        a(f"v_sub_f32 v{24+2*w}, v{24+2*w}, v10")
        a(f"v_mul_f32 v{24+2*w}, s{sL2}, v{24+2*w}")
        a(f"v_exp_f32 v{24+2*w}, v{24+2*w}")
        a(f"v_fmac_f32 v11, v{24+2*w}, v{25+2*w}")
    a("s_waitcnt lgkmcnt(0)")
    for c in range(4):
        a(f"v_mul_f32 v{12+c}, v24, v{40+c}")
    for w in range(1, 4):
        for c in range(4):
            a(f"v_fmac_f32 v{12+c}, v{24+2*w}, v{40+4*w+c}")
    for r in (10, 11, 12, 13, 14, 15):
        a(f"v_min_u32 v{r}, -2, v{r}")
    a("s_lshl_b32 s56, s14, 11"); a(f"s_add_u32 s56, s56, {WS_PO}")
    a(f"buffer_store_dwordx4 v[12:15], v9, s[{sWS}:{sWS+3}], s56 offen sc1")
    a("s_lshl_b32 s56, s14, 5"); a(f"s_add_u32 s56, s56, {WS_ML}")
    a("v_lshlrev_b32 v8, 3, v6")
    a("v_and_b32 v7, 31, v0")
    a("v_cmp_eq_u32 vcc, 0, v7")
    a("s_and_saveexec_b64 s[58:59], vcc")
    a(f"buffer_store_dwordx2 v[10:11], v8, s[{sWS}:{sWS+3}], s56 offen sc1")
    a("s_mov_b64 exec, s[58:59]")
    a("L_role:")
    stamp(a)
    if os.environ.get("NOTAIL"): a("s_branch L_fin")
    a("s_cmp_ge_u32 s11, 30"); a("s_cbranch_scc1 L_Z")
    a("s_cmp_ge_u32 s11, 16"); a("s_cbranch_scc1 L_F")

    a("v_lshrrev_b32 v6, 7, v0")
    a("v_and_b32 v7, 127, v0")
    a("v_lshlrev_b32 v16, 14, v6")
    a("v_lshl_add_u32 v16, v7, 4, v16")
    a("v_lshlrev_b32 v17, 8, v6")
    a("v_lshrrev_b32 v18, 5, v7")
    a("v_lshl_add_u32 v17, v18, 3, v17")
    a("s_lshl_b32 s63, s10, 10"); a(f"s_add_u32 s63, s63, {WS_ML}")
    gemv_addr(a, 76, 77, L_W1, L_XN, rowsh=6)
    a("s_mov_b32 s62, 0")
    a("L_o1:")
    for s in range(8):
        a(f"buffer_load_dwordx2 v[{20+2*s}:{21+2*s}], v17, s[{sWS}:{sWS+3}], s63 offen offset:{32*s} sc1")
    a("s_waitcnt vmcnt(0)")
    sent_check(a, range(20, 36), 10)
    poll_tail(a, "L_o1")
    a("s_mov_b32 s62, 0")
    a("L_o2:")
    a("s_lshl_b32 s63, s10, 16"); a(f"s_add_u32 s63, s63, {WS_PO}")
    for s in range(8):
        if s % 2 == 0 and s > 0:
            a("s_add_u32 s63, s63, 4096")
        a(f"buffer_load_dwordx4 v[{36+4*s}:{39+4*s}], v16, s[{sWS}:{sWS+3}], s63 offen offset:{2048*(s%2)} sc1")
    a("s_waitcnt vmcnt(0)")
    sent_check(a, range(36, 68), 10)
    poll_tail(a, "L_o2")
    stamp(a)
    a("v_max_f32 v10, v20, v22")
    for s in range(2, 8):
        a(f"v_max_f32 v10, v10, v{20+2*s}")
    a("v_mov_b32 v11, 0")
    for s in range(8):
        a(f"v_sub_f32 v{20+2*s}, v{20+2*s}, v10")
        a(f"v_mul_f32 v{20+2*s}, s{sL2}, v{20+2*s}")
        a(f"v_exp_f32 v{20+2*s}, v{20+2*s}")
        a(f"v_fmac_f32 v11, v{20+2*s}, v{21+2*s}")
    for c in range(4):
        a(f"v_mul_f32 v{12+c}, v20, v{36+c}")
    for s in range(1, 8):
        for c in range(4):
            a(f"v_fmac_f32 v{12+c}, v{20+2*s}, v{36+4*s+c}")
    a("v_rcp_f32 v10, v11")
    for c in range(4):
        a(f"v_mul_f32 v18, v{12+c}, v10")
        a(f"v_fma_f32 v19, -v18, v11, v{12+c}")
        a(f"v_fma_f32 v{12+c}, v19, v10, v18")
    a("v_cvt_pk_bf16_f32 v12, v12, v13")
    a("v_cvt_pk_bf16_f32 v13, v14, v15")
    a("v_lshlrev_b32 v10, 3, v0")
    a(f"ds_write_b64 v10, v[12:13] offset:{L_XN}")
    a("s_waitcnt lgkmcnt(0)")
    a("s_barrier")
    gemv_wave(a, 36, 76, 77, 40, woff=0, rowb=64)
    gemv_wave(a, 56, 76, 77, 60, woff=32, rowb=64)
    a("s_lshl_b32 s56, s3, 9"); a(f"s_add_u32 s56, s56, {L_RED}")
    a("v_lshlrev_b32 v4, 7, v2")
    a("v_lshl_add_u32 v4, v3, 4, v4")
    a("v_add_u32 v4, s56, v4")
    a("v_cmp_gt_u32 vcc, 4, v2")
    a("s_and_saveexec_b64 s[58:59], vcc")
    a("ds_write_b128 v4, v[36:39]")
    a("ds_write_b128 v4, v[56:59] offset:64")
    a("s_mov_b64 exec, s[58:59]")
    a("s_waitcnt lgkmcnt(0)")
    a("s_barrier")
    a("s_cmp_lg_u32 s3, 0")
    a("s_cbranch_scc1 L_fin")
    a("v_and_b32 v5, 31, v1")
    a("v_lshlrev_b32 v4, 4, v5")
    for w in range(8):
        a(f"ds_read_b128 v[{8+4*w}:{11+4*w}], v4 offset:{L_RED + w*512}")
    a("v_lshrrev_b32 v4, 3, v5"); a("v_lshlrev_b32 v4, 11, v4")
    a("v_and_b32 v5, 7, v5"); a("v_lshl_add_u32 v4, v5, 4, v4")
    a("s_lshl_b32 s56, s10, 13"); a("s_lshl_b32 s57, s11, 7"); a("s_add_u32 s56, s56, s57"); a(f"s_add_u32 s56, s56, {WS_AO}")
    a("s_waitcnt lgkmcnt(0)")
    for w in range(1, 8):
        for c in range(4):
            a(f"v_add_f32 v{8+c}, v{8+c}, v{8+4*w+c}")
    for c in range(4):
        a(f"v_min_u32 v{8+c}, -2, v{8+c}")
    a("s_mov_b32 exec_lo, -1"); a("s_mov_b32 exec_hi, 0")
    a(f"buffer_store_dwordx4 v[8:11], v4, s[{sWS}:{sWS+3}], s56 offen sc1")
    a("s_mov_b64 exec, -1")
    a("s_branch L_fin")

    a("L_F:")
    a("v_lshlrev_b32 v16, 4, v0")
    a("v_lshlrev_b32 v17, 3, v0")
    a(f"buffer_load_dwordx2 v[18:19], v17, s[{sX}:{sX+3}], 0 offen")
    gemv_addr(a, 76, 77, L_W1, L_XN)
    a("s_and_b32 s63, s15, 7"); a("s_lshl_b32 s63, s63, 13"); a(f"s_add_u32 s63, s63, {WS_AO}")
    a("s_mov_b32 s62, 0")
    a("L_f1:")
    a(f"buffer_load_dwordx4 v[36:39], v16, s[{sWS}:{sWS+3}], s63 offen sc1")
    a("s_waitcnt vmcnt(0)")
    sent_check(a, range(36, 40), 10)
    poll_tail(a, "L_f1")
    a("s_mov_b32 s62, 0")
    a("L_f2:")
    a(f"s_mov_b32 s63, {WS_AO}")
    for k in range(8):
        a(f"buffer_load_dwordx4 v[{36+4*k}:{39+4*k}], v16, s[{sWS}:{sWS+3}], s63 offen sc1")
        if k < 7: a("s_add_u32 s63, s63, 8192")
    a("s_waitcnt vmcnt(0)")
    sent_check(a, range(36, 68), 10)
    poll_tail(a, "L_f2")
    stamp(a)
    for k in range(1, 8):
        for c in range(4):
            a(f"v_add_f32 v{36+c}, v{36+c}, v{36+4*k+c}")
    for c in range(4): rbf(a, 36+c)
    a("v_lshlrev_b32 v40, 16, v18"); a("v_and_b32 v41, 0xffff0000, v18")
    a("v_lshlrev_b32 v42, 16, v19"); a("v_and_b32 v43, 0xffff0000, v19")
    for c in range(4): a(f"v_add_f32 v{36+c}, v{36+c}, v{40+c}")
    a("v_cvt_pk_bf16_f32 v36, v36, v37")
    a("v_cvt_pk_bf16_f32 v37, v38, v39")
    a(f"ds_write_b64 v17, v[36:37] offset:{L_HB}")
    a("s_waitcnt lgkmcnt(0)")
    a("s_barrier")
    a("s_cmp_ge_u32 s3, 4")
    a("s_cbranch_scc1 L_f_skip")
    a(f"ds_read_b128 v[16:19], v16 offset:{L_HB}")
    a("v_lshlrev_b32 v6, 4, v0")
    a("s_waitcnt lgkmcnt(0)")
    layernorm(a, 16, 20, 28)
    a(f"ds_write_b128 v6, v[16:19] offset:{L_XN}")
    a("L_f_skip:")
    a("s_waitcnt lgkmcnt(0)")
    a("s_barrier")
    gemv_wave(a, 36, 76, 77, 40)
    gemv_wave(a, 56, 76, 77, 60, woff=16384)
    a("s_lshl_b32 s56, s3, 8"); a(f"s_add_u32 s56, s56, {L_RED}")
    a("v_lshlrev_b32 v4, 6, v2")
    a("v_lshl_add_u32 v4, v3, 4, v4")
    a("v_add_u32 v4, s56, v4")
    a("v_cmp_gt_u32 vcc, 4, v2")
    a("s_and_saveexec_b64 s[58:59], vcc")
    a("ds_write_b128 v4, v[36:39]")
    a("ds_write_b128 v4, v[56:59] offset:2048")
    a("s_mov_b64 exec, s[58:59]")
    a("s_waitcnt lgkmcnt(0)")
    a("s_barrier")
    a("s_cmp_ge_u32 s3, 1")
    a("s_cbranch_scc1 L_f_skip2")
    a("v_lshlrev_b32 v4, 2, v1")
    for w in range(8):
        a(f"ds_read_b32 v{8+w}, v4 offset:{L_RED + w*256}")
        a(f"ds_read_b32 v{16+w}, v4 offset:{L_RED + 2048 + w*256}")
    a("s_waitcnt lgkmcnt(0)")
    for w in range(1, 8):
        a(f"v_add_f32 v8, v8, v{8+w}")
        a(f"v_add_f32 v16, v16, v{16+w}")
    rbf(a, 8); rbf(a, 16)
    a("v_mul_f32 v9, v8, v8")
    a("v_mul_f32 v9, 0x3d372713, v9")
    a("v_fma_f32 v9, v9, v8, v8")
    a("v_mul_f32 v9, 0xc0135761, v9")
    a("v_exp_f32 v9, v9")
    a("v_add_f32 v9, 1.0, v9")
    a("v_rcp_f32 v10, v9")
    a("v_mul_f32 v11, v8, v10")
    a("v_fma_f32 v12, -v11, v9, v8")
    a("v_fma_f32 v12, v12, v10, v11")
    a("v_cmp_gt_f32 vcc, 0x7f000000, v9")
    a("v_cndmask_b32 v11, v11, v12, vcc")
    rbf(a, 11)
    a("v_mul_f32 v11, v11, v16")
    a("v_cvt_pk_bf16_f32 v11, v11, v11")
    a("v_lshlrev_b32 v4, 1, v1")
    a(f"ds_write_b16 v4, v11 offset:{L_ACT}")
    a("L_f_skip2:")
    a("s_waitcnt lgkmcnt(0)")
    a("s_barrier")
    a("v_and_b32 v5, 3, v2")
    a("v_lshlrev_b32 v4, 5, v5")
    a("v_lshl_add_u32 v4, v3, 3, v4")
    a(f"ds_read_b64 v[8:9], v4 offset:{L_ACT}")
    a("v_lshrrev_b32 v6, 2, v2")
    a("v_lshl_add_u32 v6, v3, 2, v6")
    a("v_lshlrev_b32 v6, 10, v6")
    a("v_lshl_add_u32 v6, v5, 3, v6")
    a("s_lshl_b32 s56, s3, 7"); a(f"s_add_u32 s56, s56, {L_W3}")
    a("v_add_u32 v6, s56, v6")
    for m in range(4):
        a(f"ds_read_b64_tr_b16 v[{10+2*m}:{11+2*m}], v6 offset:{32*m}")
    a("s_waitcnt lgkmcnt(0)")
    for m in range(4):
        a(f"v_mfma_f32_16x16x16_bf16 v[{20+4*m}:{23+4*m}], v[{10+2*m}:{11+2*m}], v[8:9], 0")
    a("v_lshlrev_b32 v4, 11, v2")
    a("v_lshl_add_u32 v4, v3, 4, v4")
    a("s_lshl_b32 s56, s15, 13"); a("s_lshl_b32 s57, s3, 8"); a("s_add_u32 s56, s56, s57"); a(f"s_add_u32 s56, s56, {WS_DP}")
    for r in range(20, 36):
        a(f"v_min_u32 v{r}, -2, v{r}")
    a("v_cmp_gt_u32 vcc, 4, v2")
    a("s_and_saveexec_b64 s[58:59], vcc")
    for m in range(4):
        a(f"buffer_store_dwordx4 v[{20+4*m}:{23+4*m}], v4, s[{sWS}:{sWS+3}], s56 offen offset:{64*m} sc1")
    a("s_mov_b64 exec, s[58:59]")
    a("s_branch L_fin")

    a("L_Z:")
    a("v_and_b32 v4, 31, v0")
    a("v_lshrrev_b32 v5, 5, v0")
    a("v_lshlrev_b32 v16, 13, v5")
    a("v_lshl_add_u32 v16, v4, 4, v16")
    a("v_lshlrev_b32 v17, 4, v4")
    a("v_lshlrev_b32 v18, 3, v4")
    a("s_lshl_b32 s57, s15, 8")
    a(f"buffer_load_dwordx2 v[6:7], v18, s[{sX}:{sX+3}], s57 offen")
    a("s_mov_b32 s62, 0")
    a("L_z1:")
    a("s_lshl_b32 s63, s15, 9"); a(f"s_add_u32 s63, s63, {WS_AO}")
    for k in range(8):
        a(f"buffer_load_dwordx4 v[{36+4*k}:{39+4*k}], v17, s[{sWS}:{sWS+3}], s63 offen sc1")
        if k < 7: a("s_add_u32 s63, s63, 8192")
    a("s_waitcnt vmcnt(0)")
    sent_check(a, range(36, 68), 10)
    poll_tail(a, "L_z1", sleep=4)
    for k in range(1, 8):
        for c in range(4):
            a(f"v_add_f32 v{36+c}, v{36+c}, v{36+4*k+c}")
    for c in range(4): rbf(a, 36+c)
    a("v_lshlrev_b32 v40, 16, v6"); a("v_and_b32 v41, 0xffff0000, v6")
    a("v_lshlrev_b32 v42, 16, v7"); a("v_and_b32 v43, 0xffff0000, v7")
    for c in range(4): a(f"v_add_f32 v{72+c}, v{36+c}, v{40+c}")
    for c in range(4): rbf(a, 72+c)
    stamp(a)
    a("s_mov_b32 s62, 0")
    a("L_z2:")
    a("s_lshl_b32 s63, s15, 9"); a(f"s_add_u32 s63, s63, {WS_DP}")
    for k in range(7):
        a(f"buffer_load_dwordx4 v[{36+4*k}:{39+4*k}], v16, s[{sWS}:{sWS+3}], s63 offen sc1")
        if k < 6: a(f"s_add_u32 s63, s63, {16*8192}")
    a("s_waitcnt vmcnt(0)")
    sent_check(a, range(36, 64), 10)
    poll_tail(a, "L_z2")
    stamp(a)
    for k in range(1, 7):
        for c in range(4):
            a(f"v_add_f32 v{36+c}, v{36+c}, v{36+4*k+c}")
    a("v_lshlrev_b32 v6, 4, v0")
    a(f"ds_write_b128 v6, v[36:39] offset:{L_FIN}")
    a("s_waitcnt lgkmcnt(0)")
    a("s_barrier")
    a("s_cmp_lg_u32 s3, 0")
    a("s_cbranch_scc1 L_fin")
    for p in range(16):
        a(f"ds_read_b128 v[{80+4*p}:{83+4*p}], v17 offset:{L_FIN + 512*p}")
    a("s_waitcnt lgkmcnt(0)")
    for p in range(1, 16):
        for c in range(4):
            a(f"v_add_f32 v{80+c}, v{80+c}, v{80+4*p+c}")
    for c in range(4):
        rbf(a, 80+c)
        a(f"v_add_f32 v{80+c}, v{80+c}, v{72+c}")
    a("v_cvt_pk_bf16_f32 v80, v80, v81")
    a("v_cvt_pk_bf16_f32 v81, v82, v83")
    a("s_lshl_b32 s57, s15, 8")
    a("s_mov_b32 exec_lo, -1"); a("s_mov_b32 exec_hi, 0")
    a(f"buffer_store_dwordx2 v[80:81], v18, s[{sOUT}:{sOUT+3}], s57 offen")
    a("s_mov_b64 exec, -1")
    a("L_fin:")
    if STAMP:
        stamp_n[0] = 15
        stamp(a)
        a("s_cmp_lg_u32 s3, 0")
        a("s_cbranch_scc1 L_end")
        a("v_lshlrev_b32 v4, 2, v1")
        a("s_lshl_b32 s56, s2, 6"); a(f"s_add_u32 s56, s56, {WS_TS}")
        a("s_mov_b64 exec, 0xffff")
        a(f"buffer_store_dword v{vST}, v4, s[{sWS}:{sWS+3}], s56 offen")
    a("L_end:")
    a("s_endpgm")
    nv = NV + (1 if STAMP else 0)
    acc = (nv + 3) // 4 * 4
    desc = f""".section .rodata,"a"
.p2align 6
.amdhsa_kernel {name}
  .amdhsa_next_free_vgpr {nv}
  .amdhsa_next_free_sgpr 102
  .amdhsa_accum_offset {acc}
  .amdhsa_group_segment_fixed_size 0
  .amdhsa_kernarg_size 96
  .amdhsa_user_sgpr_count 2
  .amdhsa_user_sgpr_kernarg_segment_ptr 1
  .amdhsa_system_sgpr_workgroup_id_x 1
.end_amdhsa_kernel
"""
    body = a.finalize()
    out = HEADER + f"; @launch grid=(256,1,1) block=(576,1,1) lds={L_END}\n" + '.amdgcn_target "amdgcn-amd-amdhsa--gfx950"\n' + body + desc
    path = sys.argv[1] if len(sys.argv) > 1 else "k3.s"
    open(path, "w").write(out)
    print("wrote", path, len(out))

if __name__ == "__main__":
    main()
```

```python
import sys, os, re
from asmlib import Asm

NAME = "sequential_preLN__gqa_block_cached__geglu_ffn__decode"
HEADER = open("cdna_kernels/%s.s.ref" % NAME).read().split("; Override launch")[0]

WS_Q    = 0
WS_MB   = 0x8000
WS_PO   = 0x10000
WS_ML   = 0x90000
WS_AO   = 0xA0000
WS_DP   = 0xC0000
WS_TS   = 0x1A0000
WS_CT   = 0x1A8000
WS_SIZE = 0x1D0000 if os.environ.get("STAMP", "0") == "1" else 0x1B0000

LOG2E = 0x3fb8aa3b
SCALE = 0x3db504f3
EPS   = 0x3727c5ac

NSLOT = int(os.environ.get("NSLOT", 4))
NT = " nt" if os.environ.get("NT", "1") == "1" else ""
NTV = " nt" if os.environ.get("NTV", "0") == "1" else ""
STAMP = os.environ.get("STAMP", "0") == "1"
SPIN = 1 << 16
BAR = int(os.environ.get("BAR", 0))
DMA = os.environ.get("DMA", "ogd")
DNT = " nt" if os.environ.get("DNT", "1") == "1" else ""

L_O, L_XN, P_RED, L_QS, L_QL, L_ML, L_FLG, L_ACT = 0, 8192, 12288, 14336, 14464, 15488, 15744, 16128
L_RED, L_HB, L_FIN = 0, 4096, 0
L_FREE = L_FLG + 96
L_RING = 16384
NSL = 9
WS0 = 64 % NSL
L_W1 = L_RING + WS0*16384
L_W2, L_W3 = L_W1 + 16384, L_W1 + 32768
WK = int(os.environ.get("WK", 0))
WSL = int(os.environ.get("WSL", 2))
NB = os.environ.get("NB", "1") == "1"
LP = os.environ.get("LP", "of")
WL = os.environ.get("WL", "f")
DRY = os.environ.get("DRY", "0") == "1"
SG = os.environ.get("SG", "")
SK = int(os.environ.get("SK", 2))
PP = os.environ.get("PP", "")
SW = os.environ.get("SW", "")
ZS = int(os.environ.get("ZS", 1))
L_PF = L_FLG + 140
GAP = int(os.environ.get("GAP", 5))
NPP = int(os.environ.get("NPP", 4))
DSL = int(os.environ.get("DSL", 64))
L_PST = L_FLG + 92
PS = int(os.environ.get("PS", 1))
L_DONE = L_FLG + 88
CONT = os.environ.get("CONT", "1") == "1"
L_END = L_RING + NSL*16384
S0 = int(os.environ.get("S0", 16))
NOCOMP = os.environ.get("NOCOMP") == "1"
NOSW = os.environ.get("NOSW") == "1"
ROT = int(os.environ.get("ROT", 16))
CPF = os.environ.get("CPF", "1") == "1"
THR = int(os.environ.get("THR", 14))
WTHR = int(os.environ.get("WTHR", 28))
HALF = os.environ.get("HALF", "0") == "1"
PLG = 2 if (THR < 16 or (HALF and THR < 24 and os.environ.get("PL2", "1") == "1")) else 3
LAG = int(os.environ.get("LAG", 3))
LA = int(os.environ.get("LA", 8))
CMIN = int(os.environ.get("CMIN", 2))
QS = os.environ.get("QS", "1") == "1"
NPRE = int(os.environ.get("NPRE", 6))
L_PROG, L_CLM = L_FLG + 136, L_FLG + 160
L_XCNT, L_QF, L_QCNT, L_STC = L_FLG + 72, L_FLG + 76, L_FLG + 80, L_FLG + 84
DYN = False
XMAP = os.environ.get("XMAP", "1") == "1"

sK, sV, sWS, sX, sW1, sW2, sW3, sOUT, sDBG, sWQ = 16, 20, 24, 28, 32, 36, 40, 44, 48, 52
sSC, sL2 = 98, 99
sN, sBASE, sC = 96, 97, 6

vQ = 8; vA = 24; vS = 56; vP = 64; vKD = 68; vVD = 100; vKA = 132; vVA = 136; vM = 144; vDK = 152; vDV = 156; vT = 158; vF = 160
NV = 164
vST = NV

def srd(a, d, ptr, nbytes):
    a(f"s_mov_b32 s{d}, s{ptr}")
    a(f"s_and_b32 s{d+1}, s{ptr+1}, 0xffff")
    a(f"s_mov_b32 s{d+2}, {nbytes}")
    a(f"s_mov_b32 s{d+3}, 0x00020000")

def wave_allreduce(a, v, t, op):
    for ctl in ("quad_perm:[1,0,3,2]", "quad_perm:[2,3,0,1]", "row_half_mirror", "row_mirror"):
        a(f"v_{op}_f32_dpp v{v}, v{v}, v{v} {ctl} row_mask:0xf bank_mask:0xf")
    a(f"v_mov_b32 v{t}, v{v}")
    a(f"v_permlane16_swap_b32 v{v}, v{t}")
    a(f"v_{op}_f32 v{v}, v{v}, v{t}")
    a(f"v_mov_b32 v{t}, v{v}")
    a(f"v_permlane32_swap_b32 v{v}, v{t}")
    a(f"v_{op}_f32 v{v}, v{v}, v{t}")

def rbf(a, v):
    a(f"v_cvt_pk_bf16_f32 v{v}, v{v}, v{v}")
    a(f"v_lshlrev_b32 v{v}, 16, v{v}")

def layernorm(a, src, f, t):
    for i in range(4):
        a(f"v_lshlrev_b32 v{f+2*i}, 16, v{src+i}")
        a(f"v_and_b32 v{f+2*i+1}, 0xffff0000, v{src+i}")
    a(f"v_add_f32 v{t}, v{f}, v{f+1}")
    for i in range(2, 8):
        a(f"v_add_f32 v{t}, v{t}, v{f+i}")
    wave_allreduce(a, t, t+1, "add")
    a(f"v_mul_f32 v{t}, 0x3b000000, v{t}")
    a(f"v_sub_f32 v{t+1}, v{f}, v{t}")
    a(f"v_mul_f32 v{t+2}, v{t+1}, v{t+1}")
    for i in range(1, 8):
        a(f"v_sub_f32 v{t+1}, v{f+i}, v{t}")
        a(f"v_fmac_f32 v{t+2}, v{t+1}, v{t+1}")
    wave_allreduce(a, t+2, t+1, "add")
    a(f"v_mul_f32 v{t+2}, 0x3b000000, v{t+2}")
    rbf(a, t)
    rbf(a, t+2)
    a(f"v_add_f32 v{t+2}, {EPS:#x}, v{t+2}")
    rbf(a, t+2)
    a(f"v_sqrt_f32 v{t+2}, v{t+2}")
    rbf(a, t+2)
    a(f"v_rcp_f32 v{t+3}, v{t+2}")
    for i in range(8):
        a(f"v_sub_f32 v{f+i}, v{f+i}, v{t}")
        rbf(a, f+i)
        a(f"v_mul_f32 v{t+4}, v{f+i}, v{t+3}")
        a(f"v_fma_f32 v{t+5}, -v{t+4}, v{t+2}, v{f+i}")
        a(f"v_fma_f32 v{f+i}, v{t+5}, v{t+3}, v{t+4}")
    for i in range(4):
        a(f"v_cvt_pk_bf16_f32 v{src+i}, v{f+2*i}, v{f+2*i+1}")

def gemv_wave(a, vD, vWaddr, vAaddr, vt, woff=0, rowb=32):
    for ks in range(2):
        a(f"ds_read_b64_tr_b16 v[{vt+8*ks}:{vt+8*ks+1}], v{vWaddr} offset:{woff + ks*32*rowb}")
        a(f"ds_read_b64_tr_b16 v[{vt+8*ks+2}:{vt+8*ks+3}], v{vWaddr} offset:{woff + ks*32*rowb + 4*rowb}")
        a(f"ds_read_b128 v[{vt+8*ks+4}:{vt+8*ks+7}], v{vAaddr} offset:{ks*64}")
    a("s_waitcnt lgkmcnt(0)")
    a(f"v_mfma_f32_16x16x32_bf16 v[{vD}:{vD+3}], v[{vt}:{vt+3}], v[{vt+4}:{vt+7}], 0")
    a(f"v_mfma_f32_16x16x32_bf16 v[{vD}:{vD+3}], v[{vt+8}:{vt+11}], v[{vt+12}:{vt+15}], v[{vD}:{vD+3}]")

def gemv_addr(a, vW, vA, wbase, abase, rowsh=5):
    a(f"v_lshrrev_b32 v4, 2, v2")
    a(f"v_lshl_add_u32 v4, v3, 3, v4")
    a(f"v_lshlrev_b32 v4, {rowsh}, v4")
    a(f"v_and_b32 v5, 3, v2")
    a(f"v_lshl_add_u32 v4, v5, 3, v4")
    a(f"s_lshl_b32 s56, s3, {6+rowsh}")
    a(f"s_add_u32 s56, s56, {wbase}")
    a(f"v_add_u32 v{vW}, s56, v4")
    a(f"v_lshlrev_b32 v4, 10, v5")
    a(f"v_lshl_add_u32 v4, v3, 4, v4")
    a(f"s_lshl_b32 s56, s3, 7")
    a(f"s_add_u32 s56, s56, {abase}")
    a(f"v_add_u32 v{vA}, s56, v4")

stamp_n = [0]
def stamp(a, n=None):
    if not STAMP: return
    if n is None:
        n = stamp_n[0]; stamp_n[0] += 1
    a("s_memrealtime s[100:101]")
    a("s_waitcnt lgkmcnt(0)")
    a(f"v_writelane_b32 v{vST}, s100, {n}")

def lstamp(a, n):
    if not STAMP: return
    a("s_memrealtime s[100:101]")
    a("s_waitcnt lgkmcnt(0)")
    a(f"v_writelane_b32 v{vST}, s100, {n}")

def sent_check(a, regs, vt):
    regs = list(regs)
    a(f"v_max_u32 v{vt}, v{regs[0]}, v{regs[1]}")
    rest = regs[2:]
    while len(rest) >= 2:
        a(f"v_max3_u32 v{vt}, v{rest[0]}, v{rest[1]}, v{vt}"); rest = rest[2:]
    if rest:
        a(f"v_max_u32 v{vt}, v{rest[0]}, v{vt}")
    a(f"v_cmp_eq_u32 vcc, -1, v{vt}")

def poll_tail(a, lab, sleep=1):
    a("s_cmp_eq_u64 vcc, 0")
    a(f"s_cbranch_scc1 {lab}_done")
    a(f"s_sleep {sleep}")
    a("s_add_u32 s62, s62, 1")
    a(f"s_cmp_lt_u32 s62, {SPIN}")
    a(f"s_cbranch_scc1 {lab}")
    a(f"{lab}_done:")

def gather(a, tag, proxy, preg, loads, regs):
    a("s_mov_b32 s62, 0"); a("s_mov_b32 s64, 0"); a(f"s_mov_b32 s65, {0xff if tag == 'ao' else 0}")
    a(f"L_g{tag}:")
    proxy()
    for s in range(8):
        a(f"s_bitcmp1_b32 s65, {s}"); a(f"s_cbranch_scc0 LN_g{tag}l{s}")
        loads(s)
        a(f"LN_g{tag}l{s}:")
    a("s_waitcnt vmcnt(0)")
    for s in range(8):
        a(f"s_bitcmp1_b32 s65, {s}"); a(f"s_cbranch_scc0 LN_g{tag}c{s}")
        sent_check(a, regs(s), 10)
        a("s_cmp_eq_u64 vcc, 0"); a(f"s_cbranch_scc0 LN_g{tag}c{s}")
        a(f"s_bitset1_b32 s64, {s}")
        a(f"LN_g{tag}c{s}:")
    a("s_cmp_eq_u32 s64, 0xff"); a(f"s_cbranch_scc1 L_g{tag}_done")
    sent_check(a, preg, 10)
    a("s_andn2_b32 s66, vcc_lo, s64"); a("s_and_b32 s66, s66, 0xff")
    a("s_bcnt1_i32_b32 s67, s66")
    a(f"s_cmp_le_u32 s67, {SK}")
    a("s_cselect_b32 s66, 0, s66")
    a("s_or_b32 s66, s66, s64")
    a("s_andn2_b32 s65, 0xff, s66")
    a(f"s_cbranch_scc1 LN_g{tag}ns")
    a(f"s_sleep {PS}")
    a(f"LN_g{tag}ns:")
    a("s_add_u32 s62, s62, 1")
    a(f"s_cmp_lt_u32 s62, {SPIN}")
    a(f"s_cbranch_scc1 L_g{tag}")
    a(f"L_g{tag}_done:")

def ppoll(a, tag, n, nl, issue, regs, gap, on_ok=None):
    a("s_mov_b32 s62, 0")
    for k in range(n - 1):
        issue(k); a(f"s_sleep {gap}")
    a(f"L_pp{tag}:")
    for k in range(n):
        issue((k + n - 1) % n)
        a(f"s_waitcnt vmcnt({(n-1)*nl})")
        sent_check(a, regs(k), 10)
        a("s_cmp_eq_u64 vcc, 0")
        a(f"s_cbranch_scc1 L_pp{tag}_ok{k if on_ok else 0}")
    a("s_add_u32 s62, s62, 1")
    a(f"s_cmp_lt_u32 s62, {SPIN}")
    a(f"s_cbranch_scc1 L_pp{tag}")
    for k in range(n if on_ok else 1):
        a(f"L_pp{tag}_ok{k}:")
        if on_ok:
            on_ok(k)
            if k < n - 1: a(f"s_branch L_pp{tag}_done")
    a(f"L_pp{tag}_done:")

CSH = int(os.environ.get("CSH", 5))
PRE = int(os.environ.get("PRE", 1))
def load_counters(a):
    if CSH == 2:
        a("s_load_dwordx8 s[64:71], s[4:5], 0 glc")
    else:
        for k in range(8):
            a(f"s_load_dword s{64+k}, s[4:5], {k << CSH} glc")

class DAsm(Asm):
    dry = False; nb = 0
    def __call__(self, t):
        if self.dry and DRY:
            m = re.fullmatch(r"s_mov_b64 exec, (-?\d+)", t)
            if m:
                t = "s_mov_b64 exec, s[50:51]" if m.group(1) == "-1" else f"s_and_b64 exec, s[50:51], {m.group(1)}"
            elif t == "s_mov_b32 exec_lo, -1": t = "s_mov_b32 exec_lo, s50"
            elif t == "s_barrier":
                self.nb += 1
                t = f"s_cbranch_execz LN_sb{self.nb}\ns_barrier\nLN_sb{self.nb}:"
            else:
                assert "exec" not in t or t in ("s_mov_b32 exec_hi, 0", "s_mov_b64 exec, s[58:59]", "s_and_saveexec_b64 s[58:59], vcc") or t.startswith("s_cbranch_exec"), t
        Asm.__call__(self, t)

def main():
    a = DAsm()
    name = NAME + "_kernel"
    a.raw(".text"); a.raw(f".globl {name}"); a.raw(".p2align 8"); a.raw(f".type {name},@function"); a.raw(f"{name}:")
    a("s_cmp_ge_u32 s2, 256")
    a("s_cbranch_scc1 L_end")
    a("s_load_dwordx16 s[64:79], s[0:1], 0")
    a("s_load_dwordx8 s[80:87], s[0:1], 64")
    if STAMP:
        a(f"v_mov_b32 v{vST}, 0")
    a("v_and_b32 v1, 63, v0")
    a("v_lshrrev_b32 v2, 6, v0")
    a("v_readfirstlane_b32 s3, v2")
    if CPF:
        a("s_cmp_lg_u32 s3, 3"); a("s_cbranch_scc1 L_nocpf")
        a("s_getpc_b64 s[58:59]")
        a.raw("L_pc0:")
        a("v_lshlrev_b32 v4, 7, v1")
        for i in range(3):
            a(f"v_min_u32 v5, L_end-L_pc0, v4")
            a(f"global_load_dword v{20+i}, v5, s[58:59]")
            a("v_add_u32 v4, 0x2000, v4")
        a("L_nocpf:")
    a("v_and_b32 v2, 15, v1")
    a("v_lshrrev_b32 v3, 4, v1")
    a("s_lshr_b32 s11, s2, 3")
    a("s_and_b32 s12, s11, 3")
    a("s_lshr_b32 s13, s11, 2")
    if XMAP:
        a("s_add_u32 s10, s2, s13"); a("s_and_b32 s10, s10, 7")
        a("s_lshl_b32 s2, s11, 3"); a("s_or_b32 s2, s2, s10")
    else:
        a("s_and_b32 s10, s2, 7")
    a("s_lshl_b32 s7, s12, 3")
    a("s_add_u32 s7, s7, s10")
    a("s_lshl_b32 s7, s7, 22")
    if os.environ.get("MAPMB"):
        a("s_lshl_b32 s7, s11, 22"); a("s_and_b32 s13, s2, 7")
    a(f"s_mov_b32 s{sSC}, {SCALE:#x}"); a(f"s_mov_b32 s{sL2}, {LOG2E:#x}")
    a("s_lshl_b32 s14, s10, 2"); a("s_add_u32 s14, s14, s12"); a("s_lshl_b32 s14, s14, 3"); a("s_add_u32 s14, s14, s13")
    a("s_mul_i32 s15, s10, 14"); a("s_add_u32 s15, s15, s11"); a("s_sub_u32 s15, s15, 16")
    a("s_sub_u32 s56, s11, 30"); a("s_lshl_b32 s56, s56, 3"); a("s_add_u32 s56, s56, s10")
    a("s_cmp_ge_u32 s11, 30"); a("s_cselect_b32 s15, s56, s15")
    a("v_lshlrev_b32 v6, 4, v1")
    a(f"s_sub_u32 s{sC}, s3, 4")
    a(f"s_lshl_b32 s{sBASE}, s{sC}, 14"); a(f"s_add_u32 s{sBASE}, s{sBASE}, {L_RING}")
    a("s_waitcnt lgkmcnt(0)")
    srd(a, sWS, 86, WS_SIZE)
    a("s_cmp_lg_u32 s3, 0")
    a("s_cbranch_scc1 L_nw0")
    a("v_lshrrev_b32 v4, 1, v1")
    a("v_lshlrev_b32 v4, 13, v4")
    a("v_and_b32 v5, 1, v1")
    a("v_lshl_add_u32 v4, v5, 4, v4")
    a("s_lshl_b32 s56, s10, 10"); a("s_lshl_b32 s57, s11, 5"); a("s_add_u32 s56, s56, s57")
    srd(a, sWQ, 70, 512*8192)
    for m in range(16):
        a(f"buffer_load_dwordx4 v[{28+4*m}:{31+4*m}], v4, s[{sWQ}:{sWQ+3}], s56 offen")
        if m < 15 and not os.environ.get("NOWQ"): a(f"s_add_u32 s56, s56, {32*8192}")
    for i in range(4): a(f"v_mov_b32 v{12+i}, -1")
    a("s_lshl_b32 s56, s14, 11"); a(f"s_add_u32 s56, s56, {WS_PO}")
    a(f"buffer_store_dwordx4 v[12:15], v6, s[{sWS}:{sWS+3}], s56 offen sc1")
    a(f"buffer_store_dwordx4 v[12:15], v6, s[{sWS}:{sWS+3}], s56 offen offset:1024 sc1")
    a("v_lshrrev_b32 v4, 3, v1"); a("v_lshlrev_b32 v4, 11, v4")
    a("v_and_b32 v5, 7, v1"); a("v_lshl_add_u32 v4, v5, 4, v4")
    a("s_lshl_b32 s56, s10, 13"); a("s_lshl_b32 s57, s11, 7"); a("s_add_u32 s56, s56, s57"); a(f"s_add_u32 s56, s56, {WS_AO}")
    a("v_add_u32 v4, s56, v4")
    a("s_lshl_b32 s56, s14, 5"); a(f"s_add_u32 s56, s56, {WS_ML - 512}")
    a("v_add_u32 v5, s56, v6")
    a("v_cmp_gt_u32 vcc, 32, v1")
    a("v_cndmask_b32 v4, v5, v4, vcc")
    a("s_lshl_b32 s56, s2, 7"); a(f"s_add_u32 s56, s56, {WS_MB}")
    a("v_mov_b32 v5, s56")
    a("v_cmp_eq_u32 vcc, 34, v1")
    a("v_cndmask_b32 v4, v4, v5, vcc")
    a("s_lshr_b32 s56, s14, 3"); a("s_lshl_b32 s56, s56, 7"); a(f"s_add_u32 s56, s56, {WS_CT}")
    a("v_mov_b32 v5, s56")
    a("v_cmp_eq_u32 vcc, 35, v1")
    a("v_cndmask_b32 v4, v4, v5, vcc")
    a(f"v_mov_b32 v5, {8*S0}")
    a("v_cndmask_b32 v8, v12, v5, vcc")
    for i in range(1, 4): a(f"v_mov_b32 v{8+i}, -1")
    a("s_cmp_eq_u32 s13, 0"); a("s_cselect_b32 s61, 15, 7")
    a("s_cmp_lt_u32 s11, 16"); a("s_cselect_b32 s60, -1, 0")
    a("s_mov_b64 exec, s[60:61]")
    a(f"buffer_store_dwordx4 v[8:11], v4, s[{sWS}:{sWS+3}], 0 offen sc1")
    a("s_mov_b64 exec, -1")
    a("s_lshl_b32 s56, s15, 13"); a(f"s_add_u32 s56, s56, {WS_DP}")
    a("s_mov_b32 s57, 0")
    a("s_cmp_lt_u32 s11, 16"); a(f"s_cselect_b32 s57, {WS_SIZE}, s57"); a("s_cselect_b32 s56, 0, s56")
    a("s_cmp_ge_u32 s11, 30"); a(f"s_cselect_b32 s57, {WS_SIZE}, s57"); a("s_cselect_b32 s56, 0, s56")
    a("v_add_u32 v7, s57, v6")
    for c in range(8):
        if c == 4: a("s_add_u32 s56, s56, 4096")
        a(f"buffer_store_dwordx4 v[12:15], v7, s[{sWS}:{sWS+3}], s56 offen offset:{1024*(c%4)} sc1")
    a("s_branch L_b0")
    a("L_nw0:")
    srd(a, sX, 64, 4096)
    a("s_and_b32 s63, s3, 3"); a("s_lshl_b32 s63, s63, 10")
    a("s_lshr_b32 s56, s3, 2"); a("s_cmp_lg_u32 s56, 1"); a("s_cbranch_scc1 L_nox")
    a(f"buffer_load_dwordx4 v[24:27], v6, s[{sX}:{sX+3}], s63 offen")
    a("L_nox:")
    a("s_cmp_lg_u32 s3, 1"); a("s_cbranch_scc1 L_b0")
    a("v_and_b32 v4, 1, v1")
    a("v_cmp_eq_u32 vcc, 1, v4")
    a(f"v_cmp_gt_u32 s[58:59], {2*NSL}, v1")
    a("s_and_b64 vcc, vcc, s[58:59]")
    a("v_mov_b32 v4, 0"); a("v_mov_b32 v5, 0x7fffffff")
    a("v_cndmask_b32 v4, v4, v5, vcc")
    a("v_subrev_u32 v5, 32, v1")
    a("v_cmp_lt_u32 vcc, -9, v5")
    a("v_cndmask_b32 v4, v4, v5, vcc")
    a("v_lshlrev_b32 v5, 2, v1")
    a(f"ds_write_b32 v5, v4 offset:{L_FLG}")
    a("s_waitcnt lgkmcnt(0)")
    a("L_b0:")
    srd(a, sX, 64, 4096)
    a(f"s_add_u32 s{sK}, s66, s7"); a(f"s_addc_u32 s{sK+1}, s67, 0"); a(f"s_and_b32 s{sK+1}, s{sK+1}, 0xffff")
    a(f"s_mov_b32 s{sK+2}, 0x400000"); a(f"s_mov_b32 s{sK+3}, 0x00020000")
    a(f"s_add_u32 s{sV}, s68, s7"); a(f"s_addc_u32 s{sV+1}, s69, 0"); a(f"s_and_b32 s{sV+1}, s{sV+1}, 0xffff")
    a(f"s_mov_b32 s{sV+2}, 0x400000"); a(f"s_mov_b32 s{sV+3}, 0x00020000")
    srd(a, sW1, 72, 4096*1024)
    srd(a, sW2, 78, 512*3584)
    srd(a, sW3, 80, 1792*1024)
    srd(a, sOUT, 82, 4096)
    a("s_mov_b32 s4, s84"); a("s_mov_b32 s5, s85")
    a("s_mov_b32 s8, s86"); a("s_mov_b32 s9, s87")
    a("s_cmp_lt_u32 s11, 16")
    a("s_cbranch_scc1 L_p1")
    srd(a, sW1, 76, 512*3584)
    a("L_p1:")
    a("v_mov_b32 v9, 0")
    a("s_mov_b64 s[50:51], -1")
    stamp(a)
    a("s_barrier")
    a("s_cmp_eq_u32 s3, 8"); a("s_cbranch_scc1 L_loader")
    a("s_cmp_eq_u32 s3, 0"); a("s_cbranch_scc1 L_w0q")
    a("s_cmp_lt_u32 s3, 4"); a("s_cbranch_scc1 L_qwait")

    def lds_wait(tag, off, val, sleep=1):
        a("s_mov_b32 s62, 0")
        if a.dry and DRY: a(f"s_cbranch_execz L_lwd{tag}")
        a(f"L_lw{tag}:")
        a(f"ds_read_b32 v10, v9 offset:{off}")
        a("s_waitcnt lgkmcnt(0)")
        a("v_readfirstlane_b32 s56, v10")
        a(f"s_cmp_eq_u32 s56, {val}")
        a(f"s_cbranch_scc1 L_lwd{tag}")
        a(f"s_sleep {sleep}")
        a("s_add_u32 s62, s62, 1")
        a(f"s_cmp_lt_u32 s62, {SPIN*16}")
        a(f"s_cbranch_scc1 L_lw{tag}")
        a(f"L_lwd{tag}:")
    def lds_inc(off):
        a("v_mov_b32 v10, 1")
        a("s_mov_b64 exec, 1")
        a(f"ds_add_u32 v9, v10 offset:{off}")
        a("s_mov_b64 exec, -1")

    a("s_waitcnt vmcnt(0)")
    layernorm(a, 24, 28, 36)
    a("v_add_u32 v4, s63, v6")
    a(f"ds_write_b128 v4, v[24:27] offset:{L_XN}")
    lds_inc(L_XCNT)
    a("v_lshrrev_b32 v4, 2, v2")
    a("v_and_b32 v5, 3, v2")
    a("v_lshl_add_u32 v6, v4, 3, v5")
    a("v_lshlrev_b32 v6, 8, v6")
    a("v_xor_b32 v7, v2, v3")
    a("v_lshl_add_u32 v6, v7, 4, v6")
    a(f"v_add_u32 v{vKA}, s{sBASE}, v6")
    for t in range(1, 4):
        a(f"v_xor_b32 v{vKA+t}, {t<<6:#x}, v{vKA}")
    a("v_lshl_add_u32 v6, v3, 3, v4")
    a("v_lshlrev_b32 v6, 8, v6")
    a("v_and_b32 v7, 1, v3")
    a("v_lshl_add_u32 v7, v7, 2, v4")
    a("v_lshl_add_u32 v6, v7, 5, v6")
    a("v_lshl_add_u32 v6, v5, 3, v6")
    a(f"v_add_u32 v{vVA}, s{sBASE}, v6")
    for T in range(1, 8):
        a(f"v_xor_b32 v{vVA+T}, {T<<5:#x}, v{vVA}")
    for r in range(32): a(f"v_mov_b32 v{vA+r}, 0")
    a(f"v_mov_b32 v{vM}, 0xff7fffff")
    a(f"v_mov_b32 v{vM+2}, 0")
    a(f"v_mov_b32 v{vM+4}, 0")
    if os.environ.get("NOQ"): a("s_branch L_lwdc")
    a("s_branch L_qwait")

    a("L_w0q:")
    gemv_addr(a, 16, 17, L_O, L_XN)
    a("s_lshl_b32 s60, s10, 10"); a("s_lshl_b32 s57, s11, 5"); a("s_add_u32 s60, s60, s57")
    a(f"s_lshl_b32 s61, s10, {CSH}")
    a("s_waitcnt vmcnt(19)")
    for m in range(8):
        a(f"ds_write_b128 v6, v[{28+4*m}:{31+4*m}] offset:{L_O + 1024*m}")
    lds_wait("x", L_XCNT, 4)
    stamp(a, 13)
    for half in range(2):
        if half == 1:
            a("s_waitcnt vmcnt(11)")
            for m in range(8):
                a(f"ds_write_b128 v6, v[{60+4*m}:{63+4*m}] offset:{L_O + 1024*m}")
        for bt in range(2):
            for k4 in range(4):
                ks = 4*bt + k4
                r = 92 + 8*k4
                a(f"ds_read_b64_tr_b16 v[{r}:{r+1}], v16 offset:{ks*1024}")
                a(f"ds_read_b64_tr_b16 v[{r+2}:{r+3}], v16 offset:{ks*1024 + 128}")
                a(f"ds_read_b128 v[{r+4}:{r+7}], v17 offset:{(half*8 + ks)*64}")
            for k4 in range(4):
                r = 92 + 8*k4
                a(f"s_waitcnt lgkmcnt({9 - 3*k4})")
                c = "0" if (half == 0 and bt == 0 and k4 == 0) else "v[20:23]"
                a(f"v_mfma_f32_16x16x32_bf16 v[20:23], v[{r}:{r+3}], v[{r+4}:{r+7}], {c}")
    a("v_cvt_pk_bf16_f32 v20, v20, v21")
    a("v_cvt_pk_bf16_f32 v21, v22, v23")
    for k in range(16):
        bb, g = k // 4, k % 4
        a(f"v_readlane_b32 s{64+2*k}, v20, {16*g + bb}")
        a(f"v_readlane_b32 s{65+2*k}, v21, {16*g + bb}")
        if not os.environ.get("KA"): a(f"s_atomic_swap_x2 s[{64+2*k}:{65+2*k}], s[8:9], s60 offset:{bb*8192 + g*8} glc")
    a("s_mov_b32 s62, 1")
    a("s_waitcnt vmcnt(0) lgkmcnt(0)")
    stamp(a, 10)
    a("s_atomic_add s62, s[4:5], s61 glc")
    a("s_waitcnt lgkmcnt(0)")
    stamp(a, 11)
    a("s_mov_b32 s61, s62")
    a("s_cmp_lg_u32 s62, 31")
    a("s_cbranch_scc1 L_notlast")
    a("s_lshl_b32 s56, s10, 7"); a(f"s_add_u32 s56, s56, {WS_MB}")
    a("s_mov_b32 s62, 2")
    for i in range(32):
        if not os.environ.get("KE"): a(f"s_atomic_add s62, s[8:9], s56 offset:{1024*i}")
    a("L_notlast:")
    a("s_lshl_b32 s63, s2, 7"); a(f"s_add_u32 s63, s63, {WS_MB}")
    a("s_mov_b32 s62, 0")
    if os.environ.get("KB"): a("s_branch L_qgot")
    a("L_qpoll:")
    a("s_load_dword s56, s[8:9], s63 glc")
    a("s_waitcnt lgkmcnt(0)")
    a("s_cmp_eq_u32 s56, 1")
    a("s_cbranch_scc1 L_qgot")
    a("s_sleep 1")
    a("s_add_u32 s62, s62, 1")
    a(f"s_cmp_lt_u32 s62, {SPIN}")
    a("s_cbranch_scc1 L_qpoll")
    a("L_qgot:")
    lds_inc(L_QF)
    stamp(a, 12)
    a("s_branch L_qf")
    a("L_qwait:")
    lds_wait("q", L_QF, 1)
    a("L_qf:")
    stamp(a)
    a("s_lshl_b32 s56, s12, 13"); a("s_lshl_b32 s57, s10, 10"); a("s_add_u32 s56, s56, s57")
    a("s_lshl_b32 s57, s3, 7"); a("s_add_u32 s56, s56, s57")
    a("s_add_u32 s57, s56, 64")
    if not os.environ.get("KC"):
        a("s_load_dwordx16 s[64:79], s[8:9], s56 glc")
        a("s_load_dwordx16 s[80:95], s[8:9], s57 glc")
    a("s_lshl_b32 s56, s3, 7"); a(f"s_add_u32 s56, s56, {L_QL}")
    a("v_lshlrev_b32 v4, 2, v1")
    a("v_add_u32 v4, s56, v4")
    a("s_waitcnt lgkmcnt(0)")
    for i in range(32):
        a(f"v_writelane_b32 v5, s{64+i}, {i}")
    a("s_mov_b32 exec_lo, -1"); a("s_mov_b32 exec_hi, 0")
    a("ds_write_b32 v4, v5")
    a("s_mov_b64 exec, -1")
    lds_inc(L_QCNT)
    stamp(a)
    a("s_cmp_ge_u32 s3, 4"); a("s_cbranch_scc1 L_cons")
    if DYN: a("s_cmp_eq_u32 s3, 2"); a("s_cbranch_scc1 L_claimer")
    a("s_cmp_eq_u32 s3, 3"); a("s_cbranch_scc1 L_wts")
    if DRY:
        a("s_cmp_lg_u32 s3, 2"); a("s_cbranch_scc1 L_nodry")
        a(f"s_sleep {DSL}")
        for r in list(range(4, 24)) + [76, 77]: a(f"v_mov_b32 v{r}, 0")
        a("s_mov_b64 s[50:51], 0"); a("s_mov_b64 exec, 0"); a("s_mov_b32 s3, 0")
        a("s_mov_b32 s64, 0"); a("s_mov_b32 s72, 0")
        a("s_branch L_ldend")
        a("L_nodry:")
    a("s_cmp_lg_u32 s3, 0"); a("s_cbranch_scc1 L_epi")
    a("s_cmp_lg_u32 s61, 31")
    a("s_cbranch_scc1 L_notlast2")
    a("s_mov_b32 s62, 1")
    a("s_atomic_add s62, s[4:5], 240 glc")
    a("s_waitcnt lgkmcnt(0)")
    a("s_cmp_lg_u32 s62, 7")
    a("s_cbranch_scc1 L_notlast2")
    a("s_mov_b32 s62, 2")
    a(f"s_mov_b32 s56, {WS_MB + 128*128 + 4}")
    a("L_allc:")
    for i in range(8):
        a(f"s_atomic_add s62, s[8:9], s56 offset:{128*i}")
    a("s_add_u32 s56, s56, 1024")
    a(f"s_cmp_lt_u32 s56, {WS_MB + 256*128}")
    a("s_cbranch_scc1 L_allc")
    a("L_notlast2:")
    a("s_cmp_lt_u32 s11, 16"); a("s_cbranch_scc1 L_epi0")
    if os.environ.get("KD"): a("s_branch L_epi0")
    a("s_mov_b32 s62, 0")
    a("s_lshl_b32 s63, s2, 7"); a(f"s_add_u32 s63, s63, {WS_MB + 4}")
    a("L_cnt:")
    a("s_load_dword s56, s[8:9], s63 glc")
    a("s_waitcnt lgkmcnt(0)")
    a("s_cmp_eq_u32 s56, 1")
    a("s_cbranch_scc1 L_epi0")
    a("L_cnt_retry:")
    a("s_sleep 32")
    a("s_add_u32 s62, s62, 1")
    a(f"s_cmp_lt_u32 s62, {SPIN}")
    a("s_cbranch_scc1 L_cnt")
    a("s_branch L_epi0")

    a("L_wts:")
    a("s_cmp_ge_u32 s11, 30"); a("s_cbranch_scc1 L_epi")
    if os.environ.get("NODMA"): a("s_branch L_epi")
    PLW = PLG
    NPUB = 64 - PLW + 1 - WK
    a("s_mov_b32 s62, 0")
    a("L_wtp:")
    a(f"ds_read_b32 v10, v9 offset:{L_FLG + 8*((NPUB-1) % NSL)}")
    a("s_waitcnt lgkmcnt(0)")
    a("v_readfirstlane_b32 s56, v10")
    a(f"s_cmp_ge_u32 s56, {NPUB}")
    a("s_cbranch_scc1 L_wtg")
    a(f"s_sleep {WSL}")
    a("s_add_u32 s62, s62, 1")
    a(f"s_cmp_lt_u32 s62, {SPIN*16}")
    a("s_cbranch_scc1 L_wtp")
    a("L_wtg:")
    a("s_cmp_ge_u32 s11, 16"); a("s_cbranch_scc1 L_wf")
    if "o" in WL: lds_wait("po", L_PST, 2)
    a("v_lshrrev_b32 v4, 2, v1")
    a("v_lshlrev_b32 v4, 10, v4")
    a("v_and_b32 v5, 3, v1")
    a("v_lshl_add_u32 v4, v5, 4, v4")
    a("s_lshl_b32 s60, s10, 19"); a("s_lshl_b32 s57, s11, 6"); a("s_add_u32 s60, s60, s57")
    for c in range(2):
        lds_wait(f"wo{c}", L_FREE + 4*(WS0 + c), 64 + c - (NSL - 1))
        a(f"s_mov_b32 s57, {L_W1 + 16384*c}")
        a(f"LN_wo{c}:")
        for n in range(4):
            a("s_mov_b32 m0, s57")
            a(f"buffer_load_dwordx4 v4, s[{sW1}:{sW1+3}], s60 offen{DNT} lds")
            a("s_add_u32 s60, s60, 16384"); a("s_add_u32 s57, s57, 1024")
        a(f"s_cmp_lt_u32 s57, {L_W1 + 16384*(c+1)}")
        a(f"s_cbranch_scc1 LN_wo{c}")
    a("s_branch L_epi1")
    a("L_wf:")
    if "f" in WL: lds_wait("pf", L_PST, 2)
    a("v_lshrrev_b32 v4, 1, v1")
    a("s_movk_i32 s56, 3584")
    a("v_mul_lo_u32 v4, v4, s56")
    a("v_and_b32 v5, 1, v1")
    a("v_lshl_add_u32 v4, v5, 4, v4")
    a("v_lshlrev_b32 v6, 4, v1")
    for c in range(3):
        lds_wait(f"wf{c}", L_FREE + 4*(WS0 + c), 64 + c - (NSL - 1))
        a(f"s_lshl_b32 s60, s15, {5 if c < 2 else 14}")
        a(f"s_mov_b32 s57, {L_W1 + 16384*c}")
        a(f"LN_wf{c}:")
        for n in range(4):
            a("s_mov_b32 m0, s57")
            a(f"buffer_load_dwordx4 v{4 if c < 2 else 6}, s[{sW1+4*c}:{sW1+4*c+3}], s60 offen{DNT} lds")
            a(f"s_add_u32 s60, s60, {32*3584 if c < 2 else 1024}"); a("s_add_u32 s57, s57, 1024")
        a(f"s_cmp_lt_u32 s57, {L_W1 + 16384*(c+1)}")
        a(f"s_cbranch_scc1 LN_wf{c}")
    a("s_branch L_epi1")

    sI, sIDX, sCTO = 64, 65, 66
    if DYN:
        a("L_claimer:")
        a(f"s_lshr_b32 s{sCTO}, s14, 3"); a(f"s_lshl_b32 s{sCTO}, s{sCTO}, 7"); a(f"s_add_u32 s{sCTO}, s{sCTO}, {WS_CT}")
        a(f"s_mov_b32 s{sI}, {S0}")
        a("v_mov_b32 v9, 0")
        a("s_mov_b32 s68, 0")
        a("L_cl:")
        a(f"ds_read_b32 v10, v9 offset:{L_PROG}")
        a("s_waitcnt lgkmcnt(0)")
        a("v_readfirstlane_b32 s56, v10")
        a(f"s_add_u32 s56, s56, {LA}")
        a(f"s_sub_i32 s63, s56, s{sI}")
        a(f"s_cmp_ge_i32 s63, {CMIN}")
        a("s_cbranch_scc1 L_clgo")
        a("s_sleep 2")
        a("s_add_u32 s68, s68, 1")
        a(f"s_cmp_lt_u32 s68, {SPIN*16}")
        a("s_cbranch_scc1 L_cl")
        a("s_branch L_epi")
        a("L_clgo:")
        a("s_mov_b32 s62, s63")
        a(f"s_atomic_add s62, s[8:9], s{sCTO} glc")
        a(f"v_add_u32 v12, s{sI}, v1")
        a("v_and_b32 v11, 15, v12")
        a("v_lshlrev_b32 v11, 2, v11")
        a("v_lshlrev_b32 v12, 16, v12")
        a("v_add_u32 v12, v12, v1")
        a("s_lshl_b32 s56, 1, s63"); a("s_sub_u32 s56, s56, 1"); a("s_mov_b32 s57, 0")
        a("s_waitcnt lgkmcnt(0)")
        a("s_min_u32 s62, s62, 0x8000")
        a("v_add_u32 v12, s62, v12")
        a("s_mov_b64 exec, s[56:57]")
        a(f"ds_write_b32 v11, v12 offset:{L_CLM}")
        a("s_mov_b64 exec, -1")
        a(f"s_add_u32 s{sI}, s{sI}, s63")
        a("s_add_u32 s62, s62, s63")
        a("s_cmp_le_u32 s62, 512")
        a("s_cbranch_scc1 L_cl")
        a("s_branch L_epi")

    a("L_loader:")
    if not os.environ.get("NOPRIO"): a("s_setprio 3")
    a("v_xor_b32 v7, v2, v3")
    a("v_lshlrev_b32 v5, 8, v3")
    a(f"v_lshl_add_u32 v{vDK}, v7, 4, v5")
    for u in range(1, 4):
        a(f"v_xor_b32 v{vDK+u}, {u<<6:#x}, v{vDK}")
    a("v_lshlrev_b32 v4, 1, v3")
    a("v_xor_b32 v4, v2, v4")
    a(f"v_lshl_add_u32 v{vDV}, v4, 4, v5")
    a(f"v_xor_b32 v{vDV+1}, 0x80, v{vDV}")
    if NOSW:
        for r in range(6): a(f"v_mov_b32 v{vDK+r}, v6")
    a(f"s_lshr_b32 s70, s14, 3"); a(f"s_mul_i32 s70, s70, {ROT}")
    PL = PLG
    sSL, sPS, sFE = 71, 72, 73
    def pub(sval):
        a(f"v_mov_b32 v10, {sval}")
        a(f"v_mov_b32 v13, s{sPS}")
        a("s_mov_b64 exec, 1")
        a(f"ds_write_b32 v13, v10 offset:{L_FLG}")
        a("s_mov_b64 exec, -1")
        a(f"s_add_u32 s{sPS}, s{sPS}, 8")
        a(f"s_cmp_eq_u32 s{sPS}, {8*NSL}")
        a(f"s_cselect_b32 s{sPS}, 0, s{sPS}")
    def fetch_flags():
        a(f"v_mov_b32 v11, s{sFE}")
        a(f"ds_read_b32 v14, v11 offset:{L_FREE}")
        if DYN:
            a(f"s_and_b32 s56, s{sI}, 15"); a("s_lshl_b32 s56, s56, 2")
            a("v_mov_b32 v12, s56")
            a(f"ds_read_b32 v15, v12 offset:{L_CLM}")
    a(f"s_lshl_b32 s{sIDX}, s13, 6" if CONT else f"s_mov_b32 s{sIDX}, s13")
    a(f"s_mov_b32 s{sI}, 0"); a(f"s_mov_b32 s{sSL}, {L_RING}"); a(f"s_mov_b32 s{sPS}, 0"); a(f"s_mov_b32 s{sFE}, 0")
    a("s_mov_b32 s69, 0"); a("s_mov_b32 s74, 0"); a("v_mov_b32 v20, 0")
    lstamp(a, 1)
    fetch_flags()
    a("LN_ld:")
    a(f"s_sub_u32 s67, s{sI}, {NSL-1}")
    a("s_waitcnt lgkmcnt(0)")
    a("v_readfirstlane_b32 s56, v14")
    if STAMP:
        a(f"s_sub_u32 s76, s{sI}, 1"); a("s_and_b32 m0, s76, 63")
        a("v_writelane_b32 v20, s74, m0")
    if DYN:
        a("v_readfirstlane_b32 s57, v15")
        a(f"s_cmp_lt_u32 s{sI}, {S0}")
        a("s_cbranch_scc1 LN_fs")
        a("s_lshr_b32 s63, s57, 16")
        a(f"s_cmp_lg_u32 s63, s{sI}")
        a("s_cbranch_scc1 LN_fr")
        a(f"s_and_b32 s{sIDX}, s57, 0xffff")
        a("LN_fs:")
    a(f"s_cmp_ge_u32 s{sI}, 64")
    a("s_cbranch_scc1 L_ldend")
    a("s_cmp_eq_u32 s56, s67")
    a("s_cbranch_scc1 LN_fg")
    a("LN_fr:")
    a("s_sleep 1")
    fetch_flags()
    a("s_add_u32 s69, s69, 1")
    a(f"s_cmp_lt_u32 s69, {SPIN*16}")
    a("s_cbranch_scc1 LN_ld")
    a("s_branch L_ldend")
    a("LN_fg:")
    a(f"s_lshl_b32 s56, s{sIDX}, 13")
    a("s_add_u32 s57, s56, 4096")
    a(f"s_waitcnt vmcnt({THR})")
    if STAMP: a("s_memrealtime s[74:75]")
    for kv in range(2):
        if kv == 1 and HALF: a(f"s_waitcnt vmcnt({THR})")
        for h in range(2):
            a(f"s_add_u32 m0, s{sSL}, {kv*8192 + h*4096}")
            for qq in range(4):
                q = 4*h + qq
                vo = vDK + (q >> 1) if kv == 0 else vDV + ((q >> 1) & 1)
                sr = sK if kv == 0 else sV
                a(f"buffer_load_dwordx4 v{vo}, s[{sr}:{sr+3}], s{56+h} offen offset:{1024*qq}{NT} lds")
    a(f"s_add_u32 s{sIDX}, s{sIDX}, {1 if CONT else 8}")
    a(f"s_add_u32 s{sSL}, s{sSL}, 16384"); a(f"s_add_u32 s{sFE}, s{sFE}, 4")
    a(f"s_cmp_eq_u32 s{sFE}, {4*NSL}")
    a(f"s_cselect_b32 s{sFE}, 0, s{sFE}"); a(f"s_cselect_b32 s{sSL}, {L_RING}, s{sSL}")
    a(f"s_cmp_lt_u32 s{sI}, {PL}")
    a("s_cbranch_scc1 LN_np")
    a(f"s_sub_u32 s67, s{sI}, {PL - 1}")
    pub("s67")
    a("LN_np:")
    a(f"s_add_u32 s{sI}, s{sI}, 1")
    if DYN:
        a(f"v_mov_b32 v10, s{sI}")
        a("s_mov_b64 exec, 1")
        a(f"ds_write_b32 v9, v10 offset:{L_PROG}")
        a("s_mov_b64 exec, -1")
    fetch_flags()
    if STAMP:
        a(f"s_cmp_lg_u32 s{sI}, 30"); a("s_cbranch_scc1 LN_nomid")
        lstamp(a, 5)
        a("LN_nomid:")
    if STAMP:
        a(f"s_cmp_lg_u32 s{sI}, 9"); a("s_cbranch_scc1 LN_ld")
        lstamp(a, 2)
    a("s_branch LN_ld")
    a("L_ldend:")
    a.dry = True
    lstamp(a, 3)
    if STAMP:
        a("v_mov_b32 v10, s69")
        a(f"ds_write_b32 v9, v10 offset:{L_STC}")
    a("v_lshlrev_b32 v11, 3, v1")
    a(f"v_mov_b32 v10, s{sI}")
    a(f"s_mov_b64 exec, {(1<<NSL)-1}")
    a(f"ds_write_b32 v11, v10 offset:{L_FLG + 4}")
    a("s_mov_b64 exec, -1")
    for r in range(PL, 0, -1):
        a(f"s_sub_u32 s67, s{sI}, {r - 1}")
        a(f"s_waitcnt vmcnt({16*(r-1)})")
        pub("s67")
    a("s_waitcnt lgkmcnt(0)")
    a.dry = False
    if DRY: a("s_cbranch_execz L_cdone")
    if STAMP:
        lstamp(a, 4)
        a("v_lshlrev_b32 v4, 2, v1")
        a("s_lshl_b32 s56, s2, 9"); a(f"s_add_u32 s56, s56, 0x1B0000")
        a(f"buffer_store_dword v20, v4, s[{sWS}:{sWS+3}], s56 offen")
        a("s_lshl_b32 s56, s2, 6"); a(f"s_add_u32 s56, s56, {WS_TS + 0x4000}")
        a("s_mov_b64 exec, 0xffff")
        a(f"buffer_store_dword v{vST}, v4, s[{sWS}:{sWS+3}], s56 offen")
    a("s_endpgm")

    a("L_cons:")
    a("v_and_b32 v7, 3, v2")
    a("v_lshlrev_b32 v7, 8, v7")
    a("v_lshl_add_u32 v7, v3, 4, v7")
    lds_wait("c", L_QCNT, 8)
    for t in range(4):
        a(f"ds_read_b128 v[{vQ+4*t}:{vQ+4*t+3}], v7 offset:{L_QL + 64*t}")
    a(f"s_mov_b32 s{sN}, s{sC}")
    a(f"s_mov_b32 s64, s{sC}")
    a("L_poll:")
    a(f"s_lshl_b32 s56, s64, 3")
    a(f"v_mov_b32 v{vF}, s56")
    a(f"s_add_u32 s65, s{sN}, 1")
    a("s_mov_b32 s62, 0")
    a("L_poll1:")
    a(f"ds_read_b64 v[{vT}:{vT+1}], v{vF} offset:{L_FLG}")
    a("s_waitcnt lgkmcnt(0)")
    a(f"v_readfirstlane_b32 s56, v{vT}")
    a(f"v_readfirstlane_b32 s57, v{vT+1}")
    a("s_cmp_eq_u32 s56, s65")
    a("s_cbranch_scc1 L_go")
    a(f"s_cmp_ge_u32 s{sN}, s57")
    a("s_cbranch_scc1 L_cdone")
    a("s_sleep 1")
    a("s_add_u32 s62, s62, 1")
    a(f"s_cmp_lt_u32 s62, {SPIN*16}")
    a("s_cbranch_scc1 L_poll1")
    a("s_branch L_cdone")
    a("L_go:")
    for tb in range(2):
        for t in range(4):
            r = vKD + 16*tb + 4*t
            if not NOCOMP: a(f"ds_read_b128 v[{r}:{r+3}], v{vKA+t} offset:{1024*tb}")
    for T in range(3):
        for hh in range(2):
            r = vVD + 4*T + 2*hh
            if not NOCOMP: a(f"ds_read_b64_tr_b16 v[{r}:{r+1}], v{vVA+T} offset:{8192 + 1024*hh}")
    a("s_waitcnt lgkmcnt(10)")
    for tb in range(2):
        d = vS + 4*tb
        if tb == 1: a("s_waitcnt lgkmcnt(6)")
        for t in range(4):
            r = vKD + 16*tb + 4*t
            c = "0" if t == 0 else f"v[{d}:{d+3}]"
            a(f"v_mfma_f32_16x16x32_bf16 v[{d}:{d+3}], v[{r}:{r+3}], v[{vQ+4*t}:{vQ+4*t+3}], {c}")
    for T in range(3, 8):
        if T == 7: a("s_waitcnt lgkmcnt(8)")
        for hh in range(2):
            r = vVD + 4*T + 2*hh
            if not NOCOMP: a(f"ds_read_b64_tr_b16 v[{r}:{r+1}], v{vVA+T} offset:{8192 + 1024*hh}")
    a(f"s_lshl_b32 s56, s64, 2")
    a(f"v_mov_b32 v{vF}, s56")
    a(f"s_add_u32 s65, s{sN}, 1")
    a(f"v_mov_b32 v{vF+1}, s65")
    a("s_add_u32 s64, s64, 4")
    a("s_mov_b32 s66, 65536")
    a(f"s_cmp_ge_u32 s64, {NSL}")
    a(f"s_cselect_b32 s66, {65536 - NSL*16384}, s66")
    a(f"s_cselect_b32 s57, {NSL}, 0")
    a("s_sub_u32 s64, s64, s57")
    for p in range(4):
        s0, s1 = vS + 2*p, vS + 2*p + 1
        a(f"v_cvt_pk_bf16_f32 v{vT}, v{s0}, v{s1}")
        a(f"v_lshlrev_b32 v{s0}, 16, v{vT}")
        a(f"v_and_b32 v{s1}, 0xffff0000, v{vT}")
        a(f"v_mul_f32 v{s0}, s{sSC}, v{s0}")
        a(f"v_mul_f32 v{s1}, s{sSC}, v{s1}")
        a(f"v_cvt_pk_bf16_f32 v{vT}, v{s0}, v{s1}")
        a(f"v_lshlrev_b32 v{s0}, 16, v{vT}")
        a(f"v_and_b32 v{s1}, 0xffff0000, v{vT}")
        a(f"v_max3_f32 v{vM+1}, v{s0}, v{s1}, v{vM if p == 0 else vM+1}")
    a(f"v_mov_b32 v{vM+3}, v{vM+1}")
    a(f"v_permlane16_swap_b32 v{vM+1}, v{vM+3}")
    a(f"v_max_f32 v{vM+1}, v{vM+1}, v{vM+3}")
    a(f"v_mov_b32 v{vM+3}, v{vM+1}")
    a(f"v_permlane32_swap_b32 v{vM+1}, v{vM+3}")
    a(f"v_max_f32 v{vM+1}, v{vM+1}, v{vM+3}")
    a("s_waitcnt lgkmcnt(0)")
    a("s_mov_b64 exec, 1")
    a(f"ds_write_b32 v{vF}, v{vF+1} offset:{L_FREE}")
    a("s_mov_b64 exec, -1")
    for r in range(12):
        a(f"v_add_u32 v{vKA+r}, s66, v{vKA+r}")
    a(f"v_cmp_lt_f32 vcc, v{vM}, v{vM+1}")
    a("s_cmp_eq_u64 vcc, 0")
    a("s_cbranch_scc1 L_nores")
    a(f"v_sub_f32 v{vM+3}, v{vM}, v{vM+1}")
    a(f"v_mul_f32 v{vM+3}, s{sL2}, v{vM+3}")
    a(f"v_exp_f32 v{vM+3}, v{vM+3}")
    a(f"v_mov_b32 v{vM}, v{vM+1}")
    a(f"v_mul_f32 v{vM+4}, s{sL2}, v{vM+1}")
    a(f"v_mul_f32 v{vM+2}, v{vM+3}, v{vM+2}")
    for r in range(32):
        a(f"v_mul_f32 v{vA+r}, v{vM+3}, v{vA+r}")
    a("L_nores:")
    for i in range(8):
        s0 = vS + i
        a(f"v_fma_f32 v{s0}, v{s0}, s{sL2}, -v{vM+4}")
        a(f"v_exp_f32 v{s0}, v{s0}")
        a(f"v_add_f32 v{vM+2}, v{vM+2}, v{s0}")
    for p in range(4):
        a(f"v_cvt_pk_bf16_f32 v{vP+p}, v{vS+2*p}, v{vS+2*p+1}")
    for T in range(8):
        acc = vA + 4*T
        a(f"v_mfma_f32_16x16x32_bf16 v[{acc}:{acc+3}], v[{vVD+4*T}:{vVD+4*T+3}], v[{vP}:{vP+3}], v[{acc}:{acc+3}]")
    a(f"s_add_u32 s{sN}, s{sN}, 4")
    a("s_branch L_poll")
    a("L_cdone:")
    a.dry = True
    a(f"v_mov_b32 v{vM+1}, v{vM+2}")
    a(f"v_permlane16_swap_b32 v{vM+2}, v{vM+1}")
    a(f"v_add_f32 v{vM+2}, v{vM+2}, v{vM+1}")
    a(f"v_mov_b32 v{vM+1}, v{vM+2}")
    a(f"v_permlane32_swap_b32 v{vM+2}, v{vM+1}")
    a(f"v_add_f32 v{vM+1}, v{vM+2}, v{vM+1}")
    a(f"s_lshl_b32 s56, s{sC}, 11")
    a("v_lshlrev_b32 v6, 9, v2")
    a("v_lshl_add_u32 v6, v3, 4, v6")
    a("v_add_u32 v6, s56, v6")
    a(f"s_lshl_b32 s57, s{sC}, 3")
    a("v_lshlrev_b32 v7, 6, v2")
    a("v_add_u32 v7, s57, v7")
    a("v_cmp_gt_u32 vcc, 4, v2")
    a("s_and_saveexec_b64 s[58:59], vcc")
    for e in range(8):
        acc = vA + 4*e
        a(f"ds_write_b128 v6, v[{acc}:{acc+3}] offset:{L_O + e*64}")
    a(f"ds_write_b64 v7, v[{vM}:{vM+1}] offset:{L_ML}")
    a("s_mov_b64 exec, s[58:59]")
    a("v_mov_b32 v9, 0")
    a("L_epi0:")
    if NB: lds_inc(L_DONE)
    a("L_epi:")
    a("s_waitcnt vmcnt(0)")
    a("L_epi1:")
    if NB:
        lds_wait("e", L_DONE, 5)
    else:
        a("s_waitcnt lgkmcnt(0)")
        a("s_barrier")
    stamp_n[0] = 4
    stamp(a)
    if STAMP:
        a("v_mov_b32 v6, 0")
        a(f"ds_read_b32 v6, v6 offset:{L_FLG+4}")
        a("s_waitcnt lgkmcnt(0)")
        a("v_readfirstlane_b32 s56, v6")
        a(f"v_writelane_b32 v{vST}, s56, 14")
        a("v_mov_b32 v6, 0")
        a(f"ds_read_b32 v6, v6 offset:{L_STC}")
        a("s_waitcnt lgkmcnt(0)")
        a("v_readfirstlane_b32 s56, v6")
        a(f"v_writelane_b32 v{vST}, s56, 3")
    a("s_cmp_ge_u32 s3, 2")
    a("s_cbranch_scc1 L_role")
    a("v_lshrrev_b32 v6, 5, v0")
    a("v_lshlrev_b32 v8, 6, v6")
    for i in range(2):
        a(f"ds_read_b128 v[{24+4*i}:{24+4*i+3}], v8 offset:{L_ML + 16*i}")
    a("v_lshlrev_b32 v9, 4, v0")
    for w in range(4):
        a(f"ds_read_b128 v[{40+4*w}:{43+4*w}], v9 offset:{L_O + w*2048}")
    a("s_waitcnt lgkmcnt(4)")
    a("v_max_f32 v10, v24, v26")
    a("v_max3_f32 v10, v28, v30, v10")
    a("v_mov_b32 v11, 0")
    for w in range(4):
        a(f"v_sub_f32 v{24+2*w}, v{24+2*w}, v10")
        a(f"v_mul_f32 v{24+2*w}, s{sL2}, v{24+2*w}")
        a(f"v_exp_f32 v{24+2*w}, v{24+2*w}")
        a(f"v_fmac_f32 v11, v{24+2*w}, v{25+2*w}")
    a("s_waitcnt lgkmcnt(0)")
    for c in range(4):
        a(f"v_mul_f32 v{12+c}, v24, v{40+c}")
    for w in range(1, 4):
        for c in range(4):
            a(f"v_fmac_f32 v{12+c}, v{24+2*w}, v{40+4*w+c}")
    for r in (10, 11, 12, 13, 14, 15):
        a(f"v_min_u32 v{r}, -2, v{r}")
    a("s_lshl_b32 s56, s14, 11"); a(f"s_add_u32 s56, s56, {WS_PO}")
    a(f"buffer_store_dwordx4 v[12:15], v9, s[{sWS}:{sWS+3}], s56 offen sc1")
    a("s_lshl_b32 s56, s14, 5"); a(f"s_add_u32 s56, s56, {WS_ML}")
    a("v_lshlrev_b32 v8, 3, v6")
    a("v_and_b32 v7, 31, v0")
    a("v_cmp_eq_u32 vcc, 0, v7")
    a("s_and_saveexec_b64 s[58:59], vcc")
    a(f"buffer_store_dwordx2 v[10:11], v8, s[{sWS}:{sWS+3}], s56 offen sc1")
    a("s_mov_b64 exec, s[58:59]")
    if WL:
        a("v_mov_b32 v9, 0")
        a("v_mov_b32 v16, 1")
        a("s_mov_b64 exec, 1")
        a(f"ds_add_u32 v9, v16 offset:{L_PST}")
        a("s_mov_b64 exec, -1")
    a("L_role:")
    stamp(a)
    if os.environ.get("NOTAIL"): a("s_branch L_fin")
    a("s_cmp_ge_u32 s11, 30"); a("s_cbranch_scc1 L_Z")
    a("s_cmp_ge_u32 s11, 16"); a("s_cbranch_scc1 L_F")

    a("v_lshrrev_b32 v6, 7, v0")
    a("v_and_b32 v7, 127, v0")
    a("v_lshlrev_b32 v16, 14, v6")
    a("v_lshl_add_u32 v16, v7, 4, v16")
    a("v_lshlrev_b32 v17, 8, v6")
    a("v_lshrrev_b32 v18, 5, v7")
    a("v_lshl_add_u32 v17, v18, 3, v17")
    a("s_lshl_b32 s63, s10, 10"); a(f"s_add_u32 s63, s63, {WS_ML}")
    gemv_addr(a, 76, 77, L_W1, L_XN, rowsh=6)
    a("s_mov_b32 s62, 0")
    if "o" in SG:
        a("v_lshlrev_b32 v19, 8, v6")
        a("v_and_b32 v18, 7, v1")
        a("v_lshl_add_u32 v19, v18, 5, v19")
        a("s_lshl_b32 s60, s10, 16"); a(f"s_add_u32 s60, s60, {WS_PO}")
        def ld(s):
            a(f"s_add_u32 s57, s60, {4096*(s>>1)}")
            a(f"buffer_load_dwordx4 v[{36+4*s}:{39+4*s}], v16, s[{sWS}:{sWS+3}], s57 offen offset:{2048*(s%2)} sc1")
            a(f"buffer_load_dwordx2 v[{20+2*s}:{21+2*s}], v17, s[{sWS}:{sWS+3}], s63 offen offset:{32*s} sc1")
        gather(a, "ao", lambda: a(f"buffer_load_dwordx4 v[68:71], v19, s[{sWS}:{sWS+3}], s63 offen sc1"), range(68, 72), ld,
               lambda s: list(range(36+4*s, 40+4*s)) + [20+2*s, 21+2*s])
    else:
        if "o" in LP:
            a("v_lshlrev_b32 v19, 8, v6")
            a("v_lshl_add_u32 v19, v2, 4, v19")
            a("s_mov_b32 s60, s63")
            if "o" in PP:
                ppoll(a, "o", NPP, 1, lambda k: a(f"buffer_load_dwordx4 v[{80+4*k}:{83+4*k}], v19, s[{sWS}:{sWS+3}], s63 offen sc1"),
                      lambda k: range(80+4*k, 84+4*k), GAP)
            else:
                if "o" in SW:
                    a("v_mov_b32 v9, 0")
                    a("v_lshlrev_b32 v19, 4, v1")
                    a("s_cmp_lg_u32 s3, 2"); a("s_cbranch_scc1 L_ow")
                a("L_o1:")
                a(f"buffer_load_dwordx4 v[20:23], v19, s[{sWS}:{sWS+3}], s63 offen sc1")
                a("s_waitcnt vmcnt(0)")
                sent_check(a, range(20, 24), 10)
                poll_tail(a, "L_o1", sleep=PS)
                if "o" in SW:
                    lds_inc(L_PF)
                    a("L_ow:")
                    lds_wait("ow", L_PF, 1)
        else:
            a("L_o1:")
            for s in range(8):
                a(f"buffer_load_dwordx2 v[{20+2*s}:{21+2*s}], v17, s[{sWS}:{sWS+3}], s63 offen offset:{32*s} sc1")
            a("s_waitcnt vmcnt(0)")
            sent_check(a, range(20, 36), 10)
            poll_tail(a, "L_o1")
        a("s_mov_b32 s62, 0")
        a("L_o2:")
        a("s_lshl_b32 s63, s10, 16"); a(f"s_add_u32 s63, s63, {WS_PO}")
        for s in range(8):
            if s % 2 == 0 and s > 0:
                a("s_add_u32 s63, s63, 4096")
            a(f"buffer_load_dwordx4 v[{36+4*s}:{39+4*s}], v16, s[{sWS}:{sWS+3}], s63 offen offset:{2048*(s%2)} sc1")
        if "o" in LP:
            for s in range(8):
                a(f"buffer_load_dwordx2 v[{20+2*s}:{21+2*s}], v17, s[{sWS}:{sWS+3}], s60 offen offset:{32*s} sc1")
        a("s_waitcnt vmcnt(0)")
        sent_check(a, range(20 if "o" in LP else 36, 68), 10)
        poll_tail(a, "L_o2")
    stamp(a)
    a("v_max_f32 v10, v20, v22")
    for s in range(2, 8):
        a(f"v_max_f32 v10, v10, v{20+2*s}")
    a("v_mov_b32 v11, 0")
    for s in range(8):
        a(f"v_sub_f32 v{20+2*s}, v{20+2*s}, v10")
        a(f"v_mul_f32 v{20+2*s}, s{sL2}, v{20+2*s}")
        a(f"v_exp_f32 v{20+2*s}, v{20+2*s}")
        a(f"v_fmac_f32 v11, v{20+2*s}, v{21+2*s}")
    for c in range(4):
        a(f"v_mul_f32 v{12+c}, v20, v{36+c}")
    for s in range(1, 8):
        for c in range(4):
            a(f"v_fmac_f32 v{12+c}, v{20+2*s}, v{36+4*s+c}")
    a("v_rcp_f32 v10, v11")
    for c in range(4):
        a(f"v_mul_f32 v18, v{12+c}, v10")
        a(f"v_fma_f32 v19, -v18, v11, v{12+c}")
        a(f"v_fma_f32 v{12+c}, v19, v10, v18")
    a("v_cvt_pk_bf16_f32 v12, v12, v13")
    a("v_cvt_pk_bf16_f32 v13, v14, v15")
    a("v_lshlrev_b32 v10, 3, v0")
    a(f"ds_write_b64 v10, v[12:13] offset:{L_XN}")
    a("s_waitcnt lgkmcnt(0)")
    a("s_barrier")
    if os.environ.get("TS"): stamp(a, 10)
    gemv_wave(a, 36, 76, 77, 40, woff=0, rowb=64)
    gemv_wave(a, 56, 76, 77, 60, woff=32, rowb=64)
    a("s_lshl_b32 s56, s3, 9"); a(f"s_add_u32 s56, s56, {L_RED}")
    a("v_lshlrev_b32 v4, 7, v2")
    a("v_lshl_add_u32 v4, v3, 4, v4")
    a("v_add_u32 v4, s56, v4")
    a("v_cmp_gt_u32 vcc, 4, v2")
    a("s_and_saveexec_b64 s[58:59], vcc")
    a("ds_write_b128 v4, v[36:39]")
    a("ds_write_b128 v4, v[56:59] offset:64")
    a("s_mov_b64 exec, s[58:59]")
    a("s_waitcnt lgkmcnt(0)")
    a("s_barrier")
    if os.environ.get("TS"): stamp(a, 11)
    a("s_cmp_lg_u32 s3, 0")
    a("s_cbranch_scc1 L_fin")
    a("v_and_b32 v5, 31, v1")
    a("v_lshlrev_b32 v4, 4, v5")
    for w in range(8):
        a(f"ds_read_b128 v[{8+4*w}:{11+4*w}], v4 offset:{L_RED + w*512}")
    a("v_lshrrev_b32 v4, 3, v5"); a("v_lshlrev_b32 v4, 11, v4")
    a("v_and_b32 v5, 7, v5"); a("v_lshl_add_u32 v4, v5, 4, v4")
    a("s_lshl_b32 s56, s10, 13"); a("s_lshl_b32 s57, s11, 7"); a("s_add_u32 s56, s56, s57"); a(f"s_add_u32 s56, s56, {WS_AO}")
    a("s_waitcnt lgkmcnt(0)")
    for w in range(1, 8):
        for c in range(4):
            a(f"v_add_f32 v{8+c}, v{8+c}, v{8+4*w+c}")
    for c in range(4):
        a(f"v_min_u32 v{8+c}, -2, v{8+c}")
    a("s_mov_b32 exec_lo, -1"); a("s_mov_b32 exec_hi, 0")
    a(f"buffer_store_dwordx4 v[8:11], v4, s[{sWS}:{sWS+3}], s56 offen sc1")
    a("s_mov_b64 exec, -1")
    a("s_branch L_fin")

    a("L_F:")
    a("v_lshlrev_b32 v16, 4, v0")
    a("v_lshlrev_b32 v17, 3, v0")
    a(f"buffer_load_dwordx2 v[18:19], v17, s[{sX}:{sX+3}], 0 offen")
    gemv_addr(a, 76, 77, L_W1, L_XN)
    a("s_and_b32 s63, s15, 7"); a("s_lshl_b32 s63, s63, 13"); a(f"s_add_u32 s63, s63, {WS_AO}")
    a("s_mov_b32 s62, 0")
    if "f" in SG:
        a("v_and_b32 v20, 7, v1"); a("v_lshlrev_b32 v20, 13, v20")
        a("s_and_b32 s63, s15, 7"); a("s_lshl_b32 s63, s63, 7"); a("s_lshl_b32 s56, s3, 10"); a("s_add_u32 s63, s63, s56")
        a(f"s_add_u32 s63, s63, {WS_AO}")
        def ld(k):
            a(f"s_mov_b32 s57, {WS_AO + 8192*k}")
            a(f"buffer_load_dwordx4 v[{36+4*k}:{39+4*k}], v16, s[{sWS}:{sWS+3}], s57 offen sc1")
        gather(a, "af", lambda: a(f"buffer_load_dword v68, v20, s[{sWS}:{sWS+3}], s63 offen sc1"), [68, 68], ld,
               lambda k: range(36+4*k, 40+4*k))
    else:
        if "f" in LP:
            a("v_and_b32 v20, 7, v1"); a("v_lshlrev_b32 v20, 13, v20")
            a("s_and_b32 s63, s15, 7"); a("s_lshl_b32 s63, s63, 7"); a("s_lshl_b32 s56, s3, 10"); a("s_add_u32 s63, s63, s56")
            a(f"s_add_u32 s63, s63, {WS_AO}")
            if "f" in PP:
                ppoll(a, "f", NPP, 1, lambda k: a(f"buffer_load_dword v{80+k}, v20, s[{sWS}:{sWS+3}], s63 offen sc1"),
                      lambda k: [80+k, 80+k], GAP)
            else:
                if "f" in SW:
                    a("v_mov_b32 v9, 0")
                    a("s_lshr_b32 s56, s15, 3"); a("s_and_b32 s56, s56, 7"); a("s_sub_u32 s56, s56, 2"); a("s_lshl_b32 s56, s56, 10"); a("s_add_u32 s63, s63, s56")
                    a("s_cmp_lg_u32 s3, 2"); a("s_cbranch_scc1 L_fw")
                a("L_f1:")
                a(f"buffer_load_dword v36, v20, s[{sWS}:{sWS+3}], s63 offen sc1")
                a("s_waitcnt vmcnt(0)")
                sent_check(a, [36, 36], 10)
                poll_tail(a, "L_f1", sleep=PS)
                if "f" in SW:
                    lds_inc(L_PF)
                    a("L_fw:")
                    lds_wait("fw", L_PF, 1)
        else:
            a("L_f1:")
            a(f"buffer_load_dwordx4 v[36:39], v16, s[{sWS}:{sWS+3}], s63 offen sc1")
            a("s_waitcnt vmcnt(0)")
            sent_check(a, range(36, 40), 10)
            poll_tail(a, "L_f1")
        a("s_mov_b32 s62, 0")
        a("L_f2:")
        a(f"s_mov_b32 s63, {WS_AO}")
        for k in range(8):
            a(f"buffer_load_dwordx4 v[{36+4*k}:{39+4*k}], v16, s[{sWS}:{sWS+3}], s63 offen sc1")
            if k < 7: a("s_add_u32 s63, s63, 8192")
        a("s_waitcnt vmcnt(0)")
        sent_check(a, range(36, 68), 10)
        poll_tail(a, "L_f2")
    stamp(a)
    for k in range(1, 8):
        for c in range(4):
            a(f"v_add_f32 v{36+c}, v{36+c}, v{36+4*k+c}")
    for c in range(4): rbf(a, 36+c)
    a("v_lshlrev_b32 v40, 16, v18"); a("v_and_b32 v41, 0xffff0000, v18")
    a("v_lshlrev_b32 v42, 16, v19"); a("v_and_b32 v43, 0xffff0000, v19")
    for c in range(4): a(f"v_add_f32 v{36+c}, v{36+c}, v{40+c}")
    a("v_cvt_pk_bf16_f32 v36, v36, v37")
    a("v_cvt_pk_bf16_f32 v37, v38, v39")
    a(f"ds_write_b64 v17, v[36:37] offset:{L_HB}")
    a("s_waitcnt lgkmcnt(0)")
    a("s_barrier")
    if os.environ.get("TS"): stamp(a, 10)
    a("s_cmp_ge_u32 s3, 4")
    a("s_cbranch_scc1 L_f_skip")
    a(f"ds_read_b128 v[16:19], v16 offset:{L_HB}")
    a("v_lshlrev_b32 v6, 4, v0")
    a("s_waitcnt lgkmcnt(0)")
    layernorm(a, 16, 20, 28)
    a(f"ds_write_b128 v6, v[16:19] offset:{L_XN}")
    a("L_f_skip:")
    a("s_waitcnt lgkmcnt(0)")
    a("s_barrier")
    if os.environ.get("TS"): stamp(a, 11)
    gemv_wave(a, 36, 76, 77, 40)
    gemv_wave(a, 56, 76, 77, 60, woff=16384)
    a("s_lshl_b32 s56, s3, 8"); a(f"s_add_u32 s56, s56, {L_RED}")
    a("v_lshlrev_b32 v4, 6, v2")
    a("v_lshl_add_u32 v4, v3, 4, v4")
    a("v_add_u32 v4, s56, v4")
    a("v_cmp_gt_u32 vcc, 4, v2")
    a("s_and_saveexec_b64 s[58:59], vcc")
    a("ds_write_b128 v4, v[36:39]")
    a("ds_write_b128 v4, v[56:59] offset:2048")
    a("s_mov_b64 exec, s[58:59]")
    a("s_waitcnt lgkmcnt(0)")
    a("s_barrier")
    if os.environ.get("TS"): stamp(a, 12)
    a("s_cmp_ge_u32 s3, 1")
    a("s_cbranch_scc1 L_f_skip2")
    a("v_lshlrev_b32 v4, 2, v1")
    for w in range(8):
        a(f"ds_read_b32 v{8+w}, v4 offset:{L_RED + w*256}")
        a(f"ds_read_b32 v{16+w}, v4 offset:{L_RED + 2048 + w*256}")
    a("s_waitcnt lgkmcnt(0)")
    for w in range(1, 8):
        a(f"v_add_f32 v8, v8, v{8+w}")
        a(f"v_add_f32 v16, v16, v{16+w}")
    rbf(a, 8); rbf(a, 16)
    a("v_mul_f32 v9, v8, v8")
    a("v_mul_f32 v9, 0x3d372713, v9")
    a("v_fma_f32 v9, v9, v8, v8")
    a("v_mul_f32 v9, 0xc0135761, v9")
    a("v_exp_f32 v9, v9")
    a("v_add_f32 v9, 1.0, v9")
    a("v_rcp_f32 v10, v9")
    a("v_mul_f32 v11, v8, v10")
    a("v_fma_f32 v12, -v11, v9, v8")
    a("v_fma_f32 v12, v12, v10, v11")
    a("v_cmp_gt_f32 vcc, 0x7f000000, v9")
    a("v_cndmask_b32 v11, v11, v12, vcc")
    rbf(a, 11)
    a("v_mul_f32 v11, v11, v16")
    a("v_cvt_pk_bf16_f32 v11, v11, v11")
    a("v_lshlrev_b32 v4, 1, v1")
    a(f"ds_write_b16 v4, v11 offset:{L_ACT}")
    a("L_f_skip2:")
    a("s_waitcnt lgkmcnt(0)")
    a("s_barrier")
    if os.environ.get("TS"): stamp(a, 13)
    a("v_and_b32 v5, 3, v2")
    a("v_lshlrev_b32 v4, 5, v5")
    a("v_lshl_add_u32 v4, v3, 3, v4")
    a(f"ds_read_b64 v[8:9], v4 offset:{L_ACT}")
    a("v_lshrrev_b32 v6, 2, v2")
    a("v_lshl_add_u32 v6, v3, 2, v6")
    a("v_lshlrev_b32 v6, 10, v6")
    a("v_lshl_add_u32 v6, v5, 3, v6")
    a("s_lshl_b32 s56, s3, 7"); a(f"s_add_u32 s56, s56, {L_W3}")
    a("v_add_u32 v6, s56, v6")
    for m in range(4):
        a(f"ds_read_b64_tr_b16 v[{10+2*m}:{11+2*m}], v6 offset:{32*m}")
    a("s_waitcnt lgkmcnt(0)")
    for m in range(4):
        a(f"v_mfma_f32_16x16x16_bf16 v[{20+4*m}:{23+4*m}], v[{10+2*m}:{11+2*m}], v[8:9], 0")
    a("v_lshlrev_b32 v4, 11, v2")
    a("v_lshl_add_u32 v4, v3, 4, v4")
    a("s_lshl_b32 s56, s15, 13"); a("s_lshl_b32 s57, s3, 8"); a("s_add_u32 s56, s56, s57"); a(f"s_add_u32 s56, s56, {WS_DP}")
    for r in range(20, 36):
        a(f"v_min_u32 v{r}, -2, v{r}")
    a("v_cmp_gt_u32 vcc, 4, v2")
    a("s_and_saveexec_b64 s[58:59], vcc")
    for m in range(4):
        a(f"buffer_store_dwordx4 v[{20+4*m}:{23+4*m}], v4, s[{sWS}:{sWS+3}], s56 offen offset:{64*m} sc1")
    a("s_mov_b64 exec, s[58:59]")
    a("s_branch L_fin")

    a("L_Z:")
    a("v_and_b32 v4, 31, v0")
    a("v_lshrrev_b32 v5, 5, v0")
    a("v_lshlrev_b32 v16, 13, v5")
    a("v_lshl_add_u32 v16, v4, 4, v16")
    a("v_lshlrev_b32 v17, 4, v4")
    a("v_lshlrev_b32 v18, 3, v4")
    a("s_lshl_b32 s57, s15, 8")
    a(f"buffer_load_dwordx2 v[6:7], v18, s[{sX}:{sX+3}], s57 offen")
    a("s_mov_b32 s62, 0")
    a("L_z1:")
    a("s_lshl_b32 s63, s15, 9"); a(f"s_add_u32 s63, s63, {WS_AO}")
    for k in range(8):
        a(f"buffer_load_dwordx4 v[{36+4*k}:{39+4*k}], v17, s[{sWS}:{sWS+3}], s63 offen sc1")
        if k < 7: a("s_add_u32 s63, s63, 8192")
    a("s_waitcnt vmcnt(0)")
    sent_check(a, range(36, 68), 10)
    poll_tail(a, "L_z1", sleep=4)
    for k in range(1, 8):
        for c in range(4):
            a(f"v_add_f32 v{36+c}, v{36+c}, v{36+4*k+c}")
    for c in range(4): rbf(a, 36+c)
    a("v_lshlrev_b32 v40, 16, v6"); a("v_and_b32 v41, 0xffff0000, v6")
    a("v_lshlrev_b32 v42, 16, v7"); a("v_and_b32 v43, 0xffff0000, v7")
    for c in range(4): a(f"v_add_f32 v{72+c}, v{36+c}, v{40+c}")
    for c in range(4): rbf(a, 72+c)
    stamp(a)
    if "z" in LP:
        a("s_mov_b32 s62, 0")
        a("s_lshl_b32 s63, s15, 9"); a(f"s_add_u32 s63, s63, {WS_DP + 3*16*8192}")
        a("L_z2a:")
        a(f"buffer_load_dwordx4 v[36:39], v16, s[{sWS}:{sWS+3}], s63 offen sc1")
        a("s_waitcnt vmcnt(0)")
        sent_check(a, range(36, 40), 10)
        poll_tail(a, "L_z2a", sleep=PS)
    if "z" in PP:
        ZB = [36, 80, 108]
        a("s_lshl_b32 s63, s15, 9"); a(f"s_add_u32 s63, s63, {WS_DP}")
        for k in range(1, 7): a(f"s_add_u32 s{63+k}, s63, {16*8192*k}")
        def zi(t):
            for k in range(7):
                a(f"buffer_load_dwordx4 v[{ZB[t]+4*k}:{ZB[t]+4*k+3}], v16, s[{sWS}:{sWS+3}], s{63+k} offen sc1")
        def zok(t):
            for c in range(4): a(f"v_add_f32 v{28+c}, v{ZB[t]+c}, v{ZB[t]+4+c}")
            for k in range(2, 7):
                for c in range(4): a(f"v_add_f32 v{28+c}, v{28+c}, v{ZB[t]+4*k+c}")
        ppoll(a, "z", 3, 7, zi, lambda t: range(ZB[t], ZB[t]+28), GAP + 2, zok)
        stamp(a)
        for c in range(4):
            a(f"v_mov_b32 v{32+c}, v{28+c}")
            a(f"v_permlane32_swap_b32 v{28+c}, v{32+c}")
        for c in range(4): a(f"v_add_f32 v{28+c}, v{28+c}, v{32+c}")
        a("s_lshl_b32 s56, s3, 9")
        a("v_add_u32 v6, s56, v17")
        a(f"ds_write_b128 v6, v[28:31] offset:{L_FIN}")
        a("s_waitcnt lgkmcnt(0)")
        a("s_barrier")
        a("s_cmp_lg_u32 s3, 0")
        a("s_cbranch_scc1 L_fin")
        for p in range(1, 8):
            a(f"ds_read_b128 v[{132+4*p}:{135+4*p}], v17 offset:{L_FIN + 512*p}")
        a("s_waitcnt lgkmcnt(0)")
        for p in range(1, 8):
            for c in range(4):
                a(f"v_add_f32 v{28+c}, v{28+c}, v{132+4*p+c}")
        for c in range(4):
            rbf(a, 28+c)
            a(f"v_add_f32 v{28+c}, v{28+c}, v{72+c}")
        a("v_cvt_pk_bf16_f32 v28, v28, v29")
        a("v_cvt_pk_bf16_f32 v29, v30, v31")
        a("s_lshl_b32 s57, s15, 8")
        a("s_mov_b32 exec_lo, -1"); a("s_mov_b32 exec_hi, 0")
        a(f"buffer_store_dwordx2 v[28:29], v18, s[{sOUT}:{sOUT+3}], s57 offen")
        a("s_mov_b64 exec, -1")
        a("s_branch L_fin")
    a("s_mov_b32 s62, 0")
    a("L_z2:")
    a("s_lshl_b32 s63, s15, 9"); a(f"s_add_u32 s63, s63, {WS_DP}")
    for k in range(7):
        a(f"buffer_load_dwordx4 v[{36+4*k}:{39+4*k}], v16, s[{sWS}:{sWS+3}], s63 offen sc1")
        if k < 6: a(f"s_add_u32 s63, s63, {16*8192}")
    a("s_waitcnt vmcnt(0)")
    sent_check(a, range(36, 64), 10)
    poll_tail(a, "L_z2", sleep=ZS)
    stamp(a)
    for k in range(1, 7):
        for c in range(4):
            a(f"v_add_f32 v{36+c}, v{36+c}, v{36+4*k+c}")
    a("v_lshlrev_b32 v6, 4, v0")
    a(f"ds_write_b128 v6, v[36:39] offset:{L_FIN}")
    a("s_waitcnt lgkmcnt(0)")
    a("s_barrier")
    a("s_cmp_lg_u32 s3, 0")
    a("s_cbranch_scc1 L_fin")
    for p in range(16):
        a(f"ds_read_b128 v[{80+4*p}:{83+4*p}], v17 offset:{L_FIN + 512*p}")
    a("s_waitcnt lgkmcnt(0)")
    for p in range(1, 16):
        for c in range(4):
            a(f"v_add_f32 v{80+c}, v{80+c}, v{80+4*p+c}")
    for c in range(4):
        rbf(a, 80+c)
        a(f"v_add_f32 v{80+c}, v{80+c}, v{72+c}")
    a("v_cvt_pk_bf16_f32 v80, v80, v81")
    a("v_cvt_pk_bf16_f32 v81, v82, v83")
    a("s_lshl_b32 s57, s15, 8")
    a("s_mov_b32 exec_lo, -1"); a("s_mov_b32 exec_hi, 0")
    a(f"buffer_store_dwordx2 v[80:81], v18, s[{sOUT}:{sOUT+3}], s57 offen")
    a("s_mov_b64 exec, -1")
    a("L_fin:")
    a.dry = False
    if DRY:
        a("s_cbranch_execnz L_real")
        a("s_mov_b64 s[50:51], -1"); a("s_mov_b64 exec, -1"); a("s_mov_b32 s3, 2")
        a("s_branch L_epi1")
        a("L_real:")
    if STAMP:
        stamp_n[0] = 15
        stamp(a)
        a("s_cmp_lg_u32 s3, 0")
        a("s_cbranch_scc1 L_end")
        a("v_lshlrev_b32 v4, 2, v1")
        a("s_lshl_b32 s56, s2, 6"); a(f"s_add_u32 s56, s56, {WS_TS}")
        a("s_mov_b64 exec, 0xffff")
        a(f"buffer_store_dword v{vST}, v4, s[{sWS}:{sWS+3}], s56 offen")
    a("L_end:")
    a("s_endpgm")
    nv = NV + (1 if STAMP else 0)
    acc = (nv + 3) // 4 * 4
    desc = f""".section .rodata,"a"
.p2align 6
.amdhsa_kernel {name}
  .amdhsa_next_free_vgpr {nv}
  .amdhsa_next_free_sgpr 102
  .amdhsa_accum_offset {acc}
  .amdhsa_group_segment_fixed_size 0
  .amdhsa_kernarg_size 96
  .amdhsa_user_sgpr_count 2
  .amdhsa_user_sgpr_kernarg_segment_ptr 1
  .amdhsa_system_sgpr_workgroup_id_x 1
.end_amdhsa_kernel
"""
    body = a.finalize()
    out = HEADER + f"; @launch grid=(256,1,1) block=(576,1,1) lds={L_END}\n" + '.amdgcn_target "amdgcn-amd-amdhsa--gfx950"\n' + body + desc
    path = sys.argv[1] if len(sys.argv) > 1 else "k3.s"
    open(path, "w").write(out)
    print("wrote", path, len(out))

if __name__ == "__main__":
    main()
```

```python
import sys, os, re
from asmlib import Asm

NAME = "sequential_preLN__gqa_block_cached__geglu_ffn__decode"
HEADER = open("cdna_kernels/%s.s.ref" % NAME).read().split("; Override launch")[0]

WS_Q    = 0
WS_MB   = 0x8000
WS_PO   = 0x10000
WS_ML   = 0x90000
WS_AO   = 0xA0000
WS_DP   = 0xC0000
WS_TS   = 0x1A0000
WS_CT   = 0x1A8000
WS_SIZE = 0x1D0000 if os.environ.get("STAMP", "0") == "1" else 0x1B0000

LOG2E = 0x3fb8aa3b
SCALE = 0x3db504f3
EPS   = 0x3727c5ac

NSLOT = int(os.environ.get("NSLOT", 4))
NT = " nt" if os.environ.get("NT", "1") == "1" else ""
NTV = " nt" if os.environ.get("NTV", "0") == "1" else ""
STAMP = os.environ.get("STAMP", "0") == "1"
SPIN = 1 << 16
BAR = int(os.environ.get("BAR", 0))
DMA = os.environ.get("DMA", "ogd")
DNT = " nt" if os.environ.get("DNT", "1") == "1" else ""

L_O, L_XN, P_RED, L_QS, L_QL, L_ML, L_FLG, L_ACT = 0, 8192, 12288, 14336, 14464, 15488, 15744, 16128
L_RED, L_HB, L_FIN = 0, 4096, 0
L_FREE = L_FLG + 96
L_RING = 16384
NSL = 9
WS0 = 64 % NSL
L_W1 = L_RING + WS0*16384
L_W2, L_W3 = L_W1 + 16384, L_W1 + 32768
WK = int(os.environ.get("WK", 0))
WSL = int(os.environ.get("WSL", 2))
NB = os.environ.get("NB", "1") == "1"
LP = os.environ.get("LP", "of")
WL = os.environ.get("WL", "f")
DRY = os.environ.get("DRY", "0") == "1"
SG = os.environ.get("SG", "")
SK = int(os.environ.get("SK", 2))
PP = os.environ.get("PP", "")
SW = os.environ.get("SW", "")
ZS = int(os.environ.get("ZS", 1))
L_PF = L_FLG + 140
NB0 = int(os.environ.get("NB0", 0))
EB = os.environ.get("EB", "0") == "1"
PRR = os.environ.get("PRR", "0") == "1"
TT = os.environ.get("TT", "ofz")
MST = int(os.environ.get("MST", 3))
KST = int(os.environ.get("KST", 1))
GAP = int(os.environ.get("GAP", 5))
NPP = int(os.environ.get("NPP", 4))
DSL = int(os.environ.get("DSL", 64))
L_PST = L_FLG + 92
PS = int(os.environ.get("PS", 1))
L_DONE = L_FLG + 88
CONT = os.environ.get("CONT", "1") == "1"
L_END = L_RING + NSL*16384
S0 = int(os.environ.get("S0", 16))
NOCOMP = os.environ.get("NOCOMP") == "1"
NOSW = os.environ.get("NOSW") == "1"
ROT = int(os.environ.get("ROT", 16))
CPF = os.environ.get("CPF", "1") == "1"
THR = int(os.environ.get("THR", 14))
WTHR = int(os.environ.get("WTHR", 28))
HALF = os.environ.get("HALF", "0") == "1"
PLG = 2 if (THR < 16 or (HALF and THR < 24 and os.environ.get("PL2", "1") == "1")) else 3
LAG = int(os.environ.get("LAG", 3))
LA = int(os.environ.get("LA", 8))
CMIN = int(os.environ.get("CMIN", 2))
QS = os.environ.get("QS", "1") == "1"
NPRE = int(os.environ.get("NPRE", 6))
L_PROG, L_CLM = L_FLG + 136, L_FLG + 160
L_XCNT, L_QF, L_QCNT, L_STC = L_FLG + 72, L_FLG + 76, L_FLG + 80, L_FLG + 84
DYN = os.environ.get("DYN", "0") == "1"
XMAP = os.environ.get("XMAP", "1") == "1"

sK, sV, sWS, sX, sW1, sW2, sW3, sOUT, sDBG, sWQ = 16, 20, 24, 28, 32, 36, 40, 44, 48, 52
sSC, sL2 = 98, 99
sN, sBASE, sC = 96, 97, 6

vQ = 8; vA = 24; vS = 56; vP = 64; vKD = 68; vVD = 100; vKA = 132; vVA = 136; vM = 144; vDK = 152; vDV = 156; vT = 158; vF = 160
NV = 164
vST = NV

def srd(a, d, ptr, nbytes):
    a(f"s_mov_b32 s{d}, s{ptr}")
    a(f"s_and_b32 s{d+1}, s{ptr+1}, 0xffff")
    a(f"s_mov_b32 s{d+2}, {nbytes}")
    a(f"s_mov_b32 s{d+3}, 0x00020000")

def wave_allreduce(a, v, t, op):
    for ctl in ("quad_perm:[1,0,3,2]", "quad_perm:[2,3,0,1]", "row_half_mirror", "row_mirror"):
        a(f"v_{op}_f32_dpp v{v}, v{v}, v{v} {ctl} row_mask:0xf bank_mask:0xf")
    a(f"v_mov_b32 v{t}, v{v}")
    a(f"v_permlane16_swap_b32 v{v}, v{t}")
    a(f"v_{op}_f32 v{v}, v{v}, v{t}")
    a(f"v_mov_b32 v{t}, v{v}")
    a(f"v_permlane32_swap_b32 v{v}, v{t}")
    a(f"v_{op}_f32 v{v}, v{v}, v{t}")

def rbf(a, v):
    a(f"v_cvt_pk_bf16_f32 v{v}, v{v}, v{v}")
    a(f"v_lshlrev_b32 v{v}, 16, v{v}")

def layernorm(a, src, f, t):
    for i in range(4):
        a(f"v_lshlrev_b32 v{f+2*i}, 16, v{src+i}")
        a(f"v_and_b32 v{f+2*i+1}, 0xffff0000, v{src+i}")
    a(f"v_add_f32 v{t}, v{f}, v{f+1}")
    for i in range(2, 8):
        a(f"v_add_f32 v{t}, v{t}, v{f+i}")
    wave_allreduce(a, t, t+1, "add")
    a(f"v_mul_f32 v{t}, 0x3b000000, v{t}")
    a(f"v_sub_f32 v{t+1}, v{f}, v{t}")
    a(f"v_mul_f32 v{t+2}, v{t+1}, v{t+1}")
    for i in range(1, 8):
        a(f"v_sub_f32 v{t+1}, v{f+i}, v{t}")
        a(f"v_fmac_f32 v{t+2}, v{t+1}, v{t+1}")
    wave_allreduce(a, t+2, t+1, "add")
    a(f"v_mul_f32 v{t+2}, 0x3b000000, v{t+2}")
    rbf(a, t)
    rbf(a, t+2)
    a(f"v_add_f32 v{t+2}, {EPS:#x}, v{t+2}")
    rbf(a, t+2)
    a(f"v_sqrt_f32 v{t+2}, v{t+2}")
    rbf(a, t+2)
    a(f"v_rcp_f32 v{t+3}, v{t+2}")
    for i in range(8):
        a(f"v_sub_f32 v{f+i}, v{f+i}, v{t}")
        rbf(a, f+i)
        a(f"v_mul_f32 v{t+4}, v{f+i}, v{t+3}")
        a(f"v_fma_f32 v{t+5}, -v{t+4}, v{t+2}, v{f+i}")
        a(f"v_fma_f32 v{f+i}, v{t+5}, v{t+3}, v{t+4}")
    for i in range(4):
        a(f"v_cvt_pk_bf16_f32 v{src+i}, v{f+2*i}, v{f+2*i+1}")

def gemv_wave(a, vD, vWaddr, vAaddr, vt, woff=0, rowb=32):
    for ks in range(2):
        a(f"ds_read_b64_tr_b16 v[{vt+8*ks}:{vt+8*ks+1}], v{vWaddr} offset:{woff + ks*32*rowb}")
        a(f"ds_read_b64_tr_b16 v[{vt+8*ks+2}:{vt+8*ks+3}], v{vWaddr} offset:{woff + ks*32*rowb + 4*rowb}")
        a(f"ds_read_b128 v[{vt+8*ks+4}:{vt+8*ks+7}], v{vAaddr} offset:{ks*64}")
    a("s_waitcnt lgkmcnt(0)")
    a(f"v_mfma_f32_16x16x32_bf16 v[{vD}:{vD+3}], v[{vt}:{vt+3}], v[{vt+4}:{vt+7}], 0")
    a(f"v_mfma_f32_16x16x32_bf16 v[{vD}:{vD+3}], v[{vt+8}:{vt+11}], v[{vt+12}:{vt+15}], v[{vD}:{vD+3}]")

def gemv_w(a, vWaddr, vt, woff1, rowb):
    for tile in range(2):
        for ks in range(2):
            r = vt + 8*tile + 4*ks
            a(f"ds_read_b64_tr_b16 v[{r}:{r+1}], v{vWaddr} offset:{woff1*tile + ks*32*rowb}")
            a(f"ds_read_b64_tr_b16 v[{r+2}:{r+3}], v{vWaddr} offset:{woff1*tile + ks*32*rowb + 4*rowb}")
def gemv_m(a, vD, vAaddr, vt):
    for ks in range(2):
        a(f"ds_read_b128 v[{vt+16+4*ks}:{vt+19+4*ks}], v{vAaddr} offset:{ks*64}")
    a("s_waitcnt lgkmcnt(0)")
    for ks in range(2):
        for tile in range(2):
            r = vt + 8*tile + 4*ks; d = vD[tile]
            a(f"v_mfma_f32_16x16x32_bf16 v[{d}:{d+3}], v[{r}:{r+3}], v[{vt+16+4*ks}:{vt+19+4*ks}], " + ("0" if ks == 0 else f"v[{d}:{d+3}]"))

def gemv_addr(a, vW, vA, wbase, abase, rowsh=5):
    a(f"v_lshrrev_b32 v4, 2, v2")
    a(f"v_lshl_add_u32 v4, v3, 3, v4")
    a(f"v_lshlrev_b32 v4, {rowsh}, v4")
    a(f"v_and_b32 v5, 3, v2")
    a(f"v_lshl_add_u32 v4, v5, 3, v4")
    a(f"s_lshl_b32 s56, s3, {6+rowsh}")
    a(f"s_add_u32 s56, s56, {wbase}")
    a(f"v_add_u32 v{vW}, s56, v4")
    a(f"v_lshlrev_b32 v4, 10, v5")
    a(f"v_lshl_add_u32 v4, v3, 4, v4")
    a(f"s_lshl_b32 s56, s3, 7")
    a(f"s_add_u32 s56, s56, {abase}")
    a(f"v_add_u32 v{vA}, s56, v4")

stamp_n = [0]
def stamp(a, n=None):
    if not STAMP: return
    if n is None:
        n = stamp_n[0]; stamp_n[0] += 1
    a("s_memrealtime s[100:101]")
    a("s_waitcnt lgkmcnt(0)")
    a(f"v_writelane_b32 v{vST}, s100, {n}")

def lstamp(a, n):
    if not STAMP: return
    a("s_memrealtime s[100:101]")
    a("s_waitcnt lgkmcnt(0)")
    a(f"v_writelane_b32 v{vST}, s100, {n}")

def sent_check(a, regs, vt):
    regs = list(regs)
    a(f"v_max_u32 v{vt}, v{regs[0]}, v{regs[1]}")
    rest = regs[2:]
    while len(rest) >= 2:
        a(f"v_max3_u32 v{vt}, v{rest[0]}, v{rest[1]}, v{vt}"); rest = rest[2:]
    if rest:
        a(f"v_max_u32 v{vt}, v{rest[0]}, v{vt}")
    a(f"v_cmp_eq_u32 vcc, -1, v{vt}")

def poll_tail(a, lab, sleep=1):
    a("s_cmp_eq_u64 vcc, 0")
    a(f"s_cbranch_scc1 {lab}_done")
    a(f"s_sleep {sleep}")
    a("s_add_u32 s62, s62, 1")
    a(f"s_cmp_lt_u32 s62, {SPIN}")
    a(f"s_cbranch_scc1 {lab}")
    a(f"{lab}_done:")

def gather(a, tag, proxy, preg, loads, regs):
    a("s_mov_b32 s62, 0"); a("s_mov_b32 s64, 0"); a(f"s_mov_b32 s65, {0xff if tag == 'ao' else 0}")
    a(f"L_g{tag}:")
    proxy()
    for s in range(8):
        a(f"s_bitcmp1_b32 s65, {s}"); a(f"s_cbranch_scc0 LN_g{tag}l{s}")
        loads(s)
        a(f"LN_g{tag}l{s}:")
    a("s_waitcnt vmcnt(0)")
    for s in range(8):
        a(f"s_bitcmp1_b32 s65, {s}"); a(f"s_cbranch_scc0 LN_g{tag}c{s}")
        sent_check(a, regs(s), 10)
        a("s_cmp_eq_u64 vcc, 0"); a(f"s_cbranch_scc0 LN_g{tag}c{s}")
        a(f"s_bitset1_b32 s64, {s}")
        a(f"LN_g{tag}c{s}:")
    a("s_cmp_eq_u32 s64, 0xff"); a(f"s_cbranch_scc1 L_g{tag}_done")
    sent_check(a, preg, 10)
    a("s_andn2_b32 s66, vcc_lo, s64"); a("s_and_b32 s66, s66, 0xff")
    a("s_bcnt1_i32_b32 s67, s66")
    a(f"s_cmp_le_u32 s67, {SK}")
    a("s_cselect_b32 s66, 0, s66")
    a("s_or_b32 s66, s66, s64")
    a("s_andn2_b32 s65, 0xff, s66")
    a(f"s_cbranch_scc1 LN_g{tag}ns")
    a(f"s_sleep {PS}")
    a(f"LN_g{tag}ns:")
    a("s_add_u32 s62, s62, 1")
    a(f"s_cmp_lt_u32 s62, {SPIN}")
    a(f"s_cbranch_scc1 L_g{tag}")
    a(f"L_g{tag}_done:")

def ppoll(a, tag, n, nl, issue, regs, gap, on_ok=None):
    a("s_mov_b32 s62, 0")
    for k in range(n - 1):
        issue(k); a(f"s_sleep {gap}")
    a(f"L_pp{tag}:")
    for k in range(n):
        issue((k + n - 1) % n)
        a(f"s_waitcnt vmcnt({(n-1)*nl})")
        sent_check(a, regs(k), 10)
        a("s_cmp_eq_u64 vcc, 0")
        a(f"s_cbranch_scc1 L_pp{tag}_ok{k if on_ok else 0}")
    a("s_add_u32 s62, s62, 1")
    a(f"s_cmp_lt_u32 s62, {SPIN}")
    a(f"s_cbranch_scc1 L_pp{tag}")
    for k in range(n if on_ok else 1):
        a(f"L_pp{tag}_ok{k}:")
        if on_ok:
            on_ok(k)
            if k < n - 1: a(f"s_branch L_pp{tag}_done")
    a(f"L_pp{tag}_done:")

CSH = int(os.environ.get("CSH", 5))
PRE = int(os.environ.get("PRE", 1))
def load_counters(a):
    if CSH == 2:
        a("s_load_dwordx8 s[64:71], s[4:5], 0 glc")
    else:
        for k in range(8):
            a(f"s_load_dword s{64+k}, s[4:5], {k << CSH} glc")

class DAsm(Asm):
    dry = False; nb = 0
    def __call__(self, t):
        if self.dry and DRY:
            m = re.fullmatch(r"s_mov_b64 exec, (-?\d+)", t)
            if m:
                t = "s_mov_b64 exec, s[50:51]" if m.group(1) == "-1" else f"s_and_b64 exec, s[50:51], {m.group(1)}"
            elif t == "s_mov_b32 exec_lo, -1": t = "s_mov_b32 exec_lo, s50"
            elif t == "s_barrier":
                self.nb += 1
                t = f"s_cbranch_execz LN_sb{self.nb}\ns_barrier\nLN_sb{self.nb}:"
            else:
                assert "exec" not in t or t in ("s_mov_b32 exec_hi, 0", "s_mov_b64 exec, s[58:59]", "s_and_saveexec_b64 s[58:59], vcc") or t.startswith("s_cbranch_exec"), t
        Asm.__call__(self, t)

def main():
    a = DAsm()
    name = NAME + "_kernel"
    a.raw(".text"); a.raw(f".globl {name}"); a.raw(".p2align 8"); a.raw(f".type {name},@function"); a.raw(f"{name}:")
    a("s_cmp_ge_u32 s2, 256")
    a("s_cbranch_scc1 L_end")
    a("s_load_dwordx16 s[64:79], s[0:1], 0")
    a("s_load_dwordx8 s[80:87], s[0:1], 64")
    if STAMP:
        a(f"v_mov_b32 v{vST}, 0")
    a("v_and_b32 v1, 63, v0")
    a("v_lshrrev_b32 v2, 6, v0")
    a("v_readfirstlane_b32 s3, v2")
    if CPF:
        a("s_cmp_lg_u32 s3, 3"); a("s_cbranch_scc1 L_nocpf")
        a("s_getpc_b64 s[58:59]")
        a.raw("L_pc0:")
        a("v_lshlrev_b32 v4, 7, v1")
        for i in range(3):
            a(f"v_min_u32 v5, L_end-L_pc0, v4")
            a(f"global_load_dword v{20+i}, v5, s[58:59]")
            a("v_add_u32 v4, 0x2000, v4")
        a("L_nocpf:")
    if EB:
        a("s_cmp_lg_u32 s3, 1"); a("s_cbranch_scc1 L_nfi")
        a("v_and_b32 v4, 1, v1")
        a("v_cmp_eq_u32 vcc, 1, v4")
        a(f"v_cmp_gt_u32 s[58:59], {2*NSL}, v1")
        a("s_and_b64 vcc, vcc, s[58:59]")
        a("v_mov_b32 v4, 0"); a("v_mov_b32 v5, 0x7fffffff")
        a("v_cndmask_b32 v4, v4, v5, vcc")
        a("v_subrev_u32 v5, 32, v1")
        a("v_cmp_lt_u32 vcc, -9, v5")
        a("v_cndmask_b32 v4, v4, v5, vcc")
        a("v_lshlrev_b32 v5, 2, v1")
        a(f"ds_write_b32 v5, v4 offset:{L_FLG}")
        a("L_nfi:")
    a("v_and_b32 v2, 15, v1")
    a("v_lshrrev_b32 v3, 4, v1")
    a("s_lshr_b32 s11, s2, 3")
    a("s_and_b32 s12, s11, 3")
    a("s_lshr_b32 s13, s11, 2")
    if XMAP:
        a("s_add_u32 s10, s2, s13"); a("s_and_b32 s10, s10, 7")
        a("s_lshl_b32 s2, s11, 3"); a("s_or_b32 s2, s2, s10")
    else:
        a("s_and_b32 s10, s2, 7")
    a("s_lshl_b32 s7, s12, 3")
    a("s_add_u32 s7, s7, s10")
    a("s_lshl_b32 s7, s7, 22")
    if os.environ.get("MAPMB"):
        a("s_lshl_b32 s7, s11, 22"); a("s_and_b32 s13, s2, 7")
    a(f"s_mov_b32 s{sSC}, {SCALE:#x}"); a(f"s_mov_b32 s{sL2}, {LOG2E:#x}")
    a("s_lshl_b32 s14, s10, 2"); a("s_add_u32 s14, s14, s12"); a("s_lshl_b32 s14, s14, 3"); a("s_add_u32 s14, s14, s13")
    a("s_mul_i32 s15, s10, 14"); a("s_add_u32 s15, s15, s11"); a("s_sub_u32 s15, s15, 16")
    a("s_sub_u32 s56, s11, 30"); a("s_lshl_b32 s56, s56, 3"); a("s_add_u32 s56, s56, s10")
    a("s_cmp_ge_u32 s11, 30"); a("s_cselect_b32 s15, s56, s15")
    a("v_lshlrev_b32 v6, 4, v1")
    a(f"s_sub_u32 s{sC}, s3, 4")
    a(f"s_lshl_b32 s{sBASE}, s{sC}, 14"); a(f"s_add_u32 s{sBASE}, s{sBASE}, {L_RING}")
    a("s_waitcnt lgkmcnt(0)")
    if EB: a("s_barrier")
    srd(a, sWS, 86, WS_SIZE)
    a("s_cmp_lg_u32 s3, 0")
    a("s_cbranch_scc1 L_nw0")
    a("v_lshrrev_b32 v4, 1, v1")
    a("v_lshlrev_b32 v4, 13, v4")
    a("v_and_b32 v5, 1, v1")
    a("v_lshl_add_u32 v4, v5, 4, v4")
    a("s_lshl_b32 s56, s10, 10"); a("s_lshl_b32 s57, s11, 5"); a("s_add_u32 s56, s56, s57")
    srd(a, sWQ, 70, 512*8192)
    for m in range(16):
        a(f"buffer_load_dwordx4 v[{28+4*m}:{31+4*m}], v4, s[{sWQ}:{sWQ+3}], s56 offen")
        if m < 15 and not os.environ.get("NOWQ"): a(f"s_add_u32 s56, s56, {32*8192}")
    for i in range(4): a(f"v_mov_b32 v{12+i}, -1")
    a("s_lshl_b32 s56, s14, 11"); a(f"s_add_u32 s56, s56, {WS_PO}")
    a(f"buffer_store_dwordx4 v[12:15], v6, s[{sWS}:{sWS+3}], s56 offen sc1")
    a(f"buffer_store_dwordx4 v[12:15], v6, s[{sWS}:{sWS+3}], s56 offen offset:1024 sc1")
    a("v_lshrrev_b32 v4, 3, v1"); a("v_lshlrev_b32 v4, 11, v4")
    a("v_and_b32 v5, 7, v1"); a("v_lshl_add_u32 v4, v5, 4, v4")
    a("s_lshl_b32 s56, s10, 13"); a("s_lshl_b32 s57, s11, 7"); a("s_add_u32 s56, s56, s57"); a(f"s_add_u32 s56, s56, {WS_AO}")
    a("v_add_u32 v4, s56, v4")
    a("s_lshl_b32 s56, s14, 5"); a(f"s_add_u32 s56, s56, {WS_ML - 512}")
    a("v_add_u32 v5, s56, v6")
    a("v_cmp_gt_u32 vcc, 32, v1")
    a("v_cndmask_b32 v4, v5, v4, vcc")
    a("s_lshl_b32 s56, s2, 7"); a(f"s_add_u32 s56, s56, {WS_MB}")
    a("v_mov_b32 v5, s56")
    a("v_cmp_eq_u32 vcc, 34, v1")
    a("v_cndmask_b32 v4, v4, v5, vcc")
    a("s_lshr_b32 s56, s14, 3"); a("s_lshl_b32 s56, s56, 7"); a(f"s_add_u32 s56, s56, {WS_CT}")
    a(f"s_sub_u32 s56, s56, {35*16}")
    a("v_add_u32 v5, s56, v6")
    a("v_cmp_lt_u32 vcc, 34, v1")
    a("v_cndmask_b32 v4, v4, v5, vcc")
    for i in range(0, 4): a(f"v_mov_b32 v{8+i}, -1")
    a("s_cmp_eq_u32 s13, 0"); a("s_cselect_b32 s61, 31, 7")
    a("s_cmp_lt_u32 s11, 16"); a("s_cselect_b32 s60, -1, 0")
    a("s_mov_b64 exec, s[60:61]")
    a(f"buffer_store_dwordx4 v[8:11], v4, s[{sWS}:{sWS+3}], 0 offen sc1")
    a("s_mov_b64 exec, -1")
    a("s_lshl_b32 s56, s15, 13"); a(f"s_add_u32 s56, s56, {WS_DP}")
    a("s_mov_b32 s57, 0")
    a("s_cmp_lt_u32 s11, 16"); a(f"s_cselect_b32 s57, {WS_SIZE}, s57"); a("s_cselect_b32 s56, 0, s56")
    a("s_cmp_ge_u32 s11, 30"); a(f"s_cselect_b32 s57, {WS_SIZE}, s57"); a("s_cselect_b32 s56, 0, s56")
    a("v_add_u32 v7, s57, v6")
    for c in range(8):
        if c == 4: a("s_add_u32 s56, s56, 4096")
        a(f"buffer_store_dwordx4 v[12:15], v7, s[{sWS}:{sWS+3}], s56 offen offset:{1024*(c%4)} sc1")
    a("s_branch L_b0")
    a("L_nw0:")
    srd(a, sX, 64, 4096)
    a("s_and_b32 s63, s3, 3"); a("s_lshl_b32 s63, s63, 10")
    a("s_lshr_b32 s56, s3, 2"); a("s_cmp_lg_u32 s56, 1"); a("s_cbranch_scc1 L_nox")
    a(f"buffer_load_dwordx4 v[24:27], v6, s[{sX}:{sX+3}], s63 offen")
    a("L_nox:")
    if not EB:
        a("s_cmp_lg_u32 s3, 1"); a("s_cbranch_scc1 L_b0")
        a("v_and_b32 v4, 1, v1")
        a("v_cmp_eq_u32 vcc, 1, v4")
        a(f"v_cmp_gt_u32 s[58:59], {2*NSL}, v1")
        a("s_and_b64 vcc, vcc, s[58:59]")
        a("v_mov_b32 v4, 0"); a("v_mov_b32 v5, 0x7fffffff")
        a("v_cndmask_b32 v4, v4, v5, vcc")
        a("v_subrev_u32 v5, 32, v1")
        a("v_cmp_lt_u32 vcc, -9, v5")
        a("v_cndmask_b32 v4, v4, v5, vcc")
        a("v_lshlrev_b32 v5, 2, v1")
        a(f"ds_write_b32 v5, v4 offset:{L_FLG}")
        a("s_waitcnt lgkmcnt(0)")
    a("L_b0:")
    srd(a, sX, 64, 4096)
    a(f"s_add_u32 s{sK}, s66, s7"); a(f"s_addc_u32 s{sK+1}, s67, 0"); a(f"s_and_b32 s{sK+1}, s{sK+1}, 0xffff")
    a(f"s_mov_b32 s{sK+2}, 0x400000"); a(f"s_mov_b32 s{sK+3}, 0x00020000")
    a(f"s_add_u32 s{sV}, s68, s7"); a(f"s_addc_u32 s{sV+1}, s69, 0"); a(f"s_and_b32 s{sV+1}, s{sV+1}, 0xffff")
    a(f"s_mov_b32 s{sV+2}, 0x400000"); a(f"s_mov_b32 s{sV+3}, 0x00020000")
    srd(a, sW1, 72, 4096*1024)
    srd(a, sW2, 78, 512*3584)
    srd(a, sW3, 80, 1792*1024)
    srd(a, sOUT, 82, 4096)
    a("s_mov_b32 s4, s84"); a("s_mov_b32 s5, s85")
    a("s_mov_b32 s8, s86"); a("s_mov_b32 s9, s87")
    a("s_cmp_lt_u32 s11, 16")
    a("s_cbranch_scc1 L_p1")
    srd(a, sW1, 76, 512*3584)
    a("L_p1:")
    a("v_mov_b32 v9, 0")
    a("s_mov_b64 s[50:51], -1")
    stamp(a)
    if NB0: a("s_cmp_eq_u32 s3, 8"); a("s_cbranch_scc1 L_loader")
    if not EB: a("s_barrier")
    if not NB0: a("s_cmp_eq_u32 s3, 8"); a("s_cbranch_scc1 L_loader")
    a("s_cmp_eq_u32 s3, 0"); a("s_cbranch_scc1 L_w0q")
    a("s_cmp_lt_u32 s3, 4"); a("s_cbranch_scc1 L_qwait")

    def lds_wait(tag, off, val, sleep=1):
        a("s_mov_b32 s62, 0")
        if a.dry and DRY: a(f"s_cbranch_execz L_lwd{tag}")
        a(f"L_lw{tag}:")
        a(f"ds_read_b32 v10, v9 offset:{off}")
        a("s_waitcnt lgkmcnt(0)")
        a("v_readfirstlane_b32 s56, v10")
        a(f"s_cmp_eq_u32 s56, {val}")
        a(f"s_cbranch_scc1 L_lwd{tag}")
        a(f"s_sleep {sleep}")
        a("s_add_u32 s62, s62, 1")
        a(f"s_cmp_lt_u32 s62, {SPIN*16}")
        a(f"s_cbranch_scc1 L_lw{tag}")
        a(f"L_lwd{tag}:")
    def lds_inc(off):
        a("v_mov_b32 v10, 1")
        a("s_mov_b64 exec, 1")
        a(f"ds_add_u32 v9, v10 offset:{off}")
        a("s_mov_b64 exec, -1")

    a("s_waitcnt vmcnt(0)")
    layernorm(a, 24, 28, 36)
    a("v_add_u32 v4, s63, v6")
    a(f"ds_write_b128 v4, v[24:27] offset:{L_XN}")
    lds_inc(L_XCNT)
    a("v_lshrrev_b32 v4, 2, v2")
    a("v_and_b32 v5, 3, v2")
    a("v_lshl_add_u32 v6, v4, 3, v5")
    a("v_lshlrev_b32 v6, 8, v6")
    a("v_xor_b32 v7, v2, v3")
    a("v_lshl_add_u32 v6, v7, 4, v6")
    a(f"v_add_u32 v{vKA}, s{sBASE}, v6")
    for t in range(1, 4):
        a(f"v_xor_b32 v{vKA+t}, {t<<6:#x}, v{vKA}")
    a("v_lshl_add_u32 v6, v3, 3, v4")
    a("v_lshlrev_b32 v6, 8, v6")
    a("v_and_b32 v7, 1, v3")
    a("v_lshl_add_u32 v7, v7, 2, v4")
    a("v_lshl_add_u32 v6, v7, 5, v6")
    a("v_lshl_add_u32 v6, v5, 3, v6")
    a(f"v_add_u32 v{vVA}, s{sBASE}, v6")
    for T in range(1, 8):
        a(f"v_xor_b32 v{vVA+T}, {T<<5:#x}, v{vVA}")
    for r in range(32): a(f"v_mov_b32 v{vA+r}, 0")
    a(f"v_mov_b32 v{vM}, 0xff7fffff")
    a(f"v_mov_b32 v{vM+2}, 0")
    a(f"v_mov_b32 v{vM+4}, 0")
    if PRR:
        a(f"s_lshl_b32 s56, s{sC}, 3"); a(f"v_mov_b32 v{vF}, s56")
        a(f"s_add_u32 s65, s{sC}, 1")
        a("s_mov_b32 s62, 0")
        a("L_pr:")
        a(f"ds_read_b32 v{vT}, v{vF} offset:{L_FLG}")
        a("s_waitcnt lgkmcnt(0)")
        a(f"v_readfirstlane_b32 s56, v{vT}")
        a("s_cmp_eq_u32 s56, s65")
        a("s_cbranch_scc1 L_prg")
        a("s_sleep 1")
        a("s_add_u32 s62, s62, 1")
        a(f"s_cmp_lt_u32 s62, {SPIN*16}")
        a("s_cbranch_scc1 L_pr")
        a("L_prg:")
        for tb in range(2):
            for t in range(4):
                r = vKD + 16*tb + 4*t
                a(f"ds_read_b128 v[{r}:{r+3}], v{vKA+t} offset:{1024*tb}")
        for T in range(8):
            if T == 3: a("s_waitcnt lgkmcnt(4)")
            for hh in range(2):
                r = vVD + 4*T + 2*hh
                a(f"ds_read_b64_tr_b16 v[{r}:{r+1}], v{vVA+T} offset:{8192 + 1024*hh}")
        a(f"s_lshl_b32 s56, s{sC}, 2"); a(f"v_mov_b32 v{vF}, s56"); a(f"v_mov_b32 v{vF+1}, s65")
        a("s_waitcnt lgkmcnt(0)")
        a("s_mov_b64 exec, 1")
        a(f"ds_write_b32 v{vF}, v{vF+1} offset:{L_FREE}")
        a("s_mov_b64 exec, -1")
        for r in range(12):
            a(f"v_add_u32 v{vKA+r}, 0x10000, v{vKA+r}")
    a("s_branch L_qwait")

    a("L_w0q:")
    gemv_addr(a, 16, 17, L_O, L_XN)
    a("s_lshl_b32 s60, s10, 10"); a("s_lshl_b32 s57, s11, 5"); a("s_add_u32 s60, s60, s57")
    a(f"s_lshl_b32 s61, s10, {CSH}")
    a("s_waitcnt vmcnt(19)")
    for m in range(8):
        a(f"ds_write_b128 v6, v[{28+4*m}:{31+4*m}] offset:{L_O + 1024*m}")
    lds_wait("x", L_XCNT, 4)
    stamp(a, 13)
    for half in range(2):
        if half == 1:
            a("s_waitcnt vmcnt(11)")
            for m in range(8):
                a(f"ds_write_b128 v6, v[{60+4*m}:{63+4*m}] offset:{L_O + 1024*m}")
        for bt in range(2):
            for k4 in range(4):
                ks = 4*bt + k4
                r = 92 + 8*k4
                a(f"ds_read_b64_tr_b16 v[{r}:{r+1}], v16 offset:{ks*1024}")
                a(f"ds_read_b64_tr_b16 v[{r+2}:{r+3}], v16 offset:{ks*1024 + 128}")
                a(f"ds_read_b128 v[{r+4}:{r+7}], v17 offset:{(half*8 + ks)*64}")
            for k4 in range(4):
                r = 92 + 8*k4
                a(f"s_waitcnt lgkmcnt({9 - 3*k4})")
                c = "0" if (half == 0 and bt == 0 and k4 == 0) else "v[20:23]"
                a(f"v_mfma_f32_16x16x32_bf16 v[20:23], v[{r}:{r+3}], v[{r+4}:{r+7}], {c}")
    a("v_cvt_pk_bf16_f32 v20, v20, v21")
    a("v_cvt_pk_bf16_f32 v21, v22, v23")
    for k in range(16):
        bb, g = k // 4, k % 4
        a(f"v_readlane_b32 s{64+2*k}, v20, {16*g + bb}")
        a(f"v_readlane_b32 s{65+2*k}, v21, {16*g + bb}")
        if not os.environ.get("KA"): a(f"s_atomic_swap_x2 s[{64+2*k}:{65+2*k}], s[8:9], s60 offset:{bb*8192 + g*8} glc")
    a("s_mov_b32 s62, 1")
    a("s_waitcnt vmcnt(0) lgkmcnt(0)")
    stamp(a, 10)
    a("s_atomic_add s62, s[4:5], s61 glc")
    a("s_waitcnt lgkmcnt(0)")
    stamp(a, 11)
    a("s_mov_b32 s61, s62")
    a("s_cmp_lg_u32 s62, 31")
    a("s_cbranch_scc1 L_notlast")
    a("s_lshl_b32 s56, s10, 7"); a(f"s_add_u32 s56, s56, {WS_MB}")
    a("s_mov_b32 s62, 2")
    for i in range(32):
        if not os.environ.get("KE"): a(f"s_atomic_add s62, s[8:9], s56 offset:{1024*i}")
    a("L_notlast:")
    a("s_lshl_b32 s63, s2, 7"); a(f"s_add_u32 s63, s63, {WS_MB}")
    a("s_mov_b32 s62, 0")
    if os.environ.get("KB"): a("s_branch L_qgot")
    a("L_qpoll:")
    a("s_load_dword s56, s[8:9], s63 glc")
    a("s_waitcnt lgkmcnt(0)")
    a("s_cmp_eq_u32 s56, 1")
    a("s_cbranch_scc1 L_qgot")
    a("s_sleep 1")
    a("s_add_u32 s62, s62, 1")
    a(f"s_cmp_lt_u32 s62, {SPIN}")
    a("s_cbranch_scc1 L_qpoll")
    a("L_qgot:")
    lds_inc(L_QF)
    stamp(a, 12)
    a("s_branch L_qf")
    a("L_qwait:")
    lds_wait("q", L_QF, 1)
    a("L_qf:")
    stamp(a)
    a("s_lshl_b32 s56, s12, 13"); a("s_lshl_b32 s57, s10, 10"); a("s_add_u32 s56, s56, s57")
    a("s_lshl_b32 s57, s3, 7"); a("s_add_u32 s56, s56, s57")
    a("s_add_u32 s57, s56, 64")
    if not os.environ.get("KC"):
        a("s_load_dwordx16 s[64:79], s[8:9], s56 glc")
        a("s_load_dwordx16 s[80:95], s[8:9], s57 glc")
    a("s_lshl_b32 s56, s3, 7"); a(f"s_add_u32 s56, s56, {L_QL}")
    a("v_lshlrev_b32 v4, 2, v1")
    a("v_add_u32 v4, s56, v4")
    a("s_waitcnt lgkmcnt(0)")
    for i in range(32):
        a(f"v_writelane_b32 v5, s{64+i}, {i}")
    a("s_mov_b32 exec_lo, -1"); a("s_mov_b32 exec_hi, 0")
    a("ds_write_b32 v4, v5")
    a("s_mov_b64 exec, -1")
    lds_inc(L_QCNT)
    stamp(a)
    a("s_cmp_ge_u32 s3, 4"); a("s_cbranch_scc1 L_cons")
    if DYN: a("s_cmp_eq_u32 s3, 2"); a("s_cbranch_scc1 L_claimer")
    a("s_cmp_eq_u32 s3, 3"); a("s_cbranch_scc1 L_wts")
    if DRY:
        a("s_cmp_lg_u32 s3, 2"); a("s_cbranch_scc1 L_nodry")
        a(f"s_sleep {DSL}")
        for r in list(range(4, 24)) + [76, 77]: a(f"v_mov_b32 v{r}, 0")
        a("s_mov_b64 s[50:51], 0"); a("s_mov_b64 exec, 0"); a("s_mov_b32 s3, 0")
        a("s_mov_b32 s64, 0"); a("s_mov_b32 s72, 0")
        a("s_branch L_ldend")
        a("L_nodry:")
    a("s_cmp_lg_u32 s3, 0"); a("s_cbranch_scc1 L_epi")
    a("s_cmp_lg_u32 s61, 31")
    a("s_cbranch_scc1 L_notlast2")
    a("s_mov_b32 s62, 1")
    a("s_atomic_add s62, s[4:5], 240 glc")
    a("s_waitcnt lgkmcnt(0)")
    a("s_cmp_lg_u32 s62, 7")
    a("s_cbranch_scc1 L_notlast2")
    a("s_mov_b32 s62, 2")
    a(f"s_mov_b32 s56, {WS_MB + 128*128 + 4}")
    a("L_allc:")
    for i in range(8):
        a(f"s_atomic_add s62, s[8:9], s56 offset:{128*i}")
    a("s_add_u32 s56, s56, 1024")
    a(f"s_cmp_lt_u32 s56, {WS_MB + 256*128}")
    a("s_cbranch_scc1 L_allc")
    a("L_notlast2:")
    a("s_cmp_lt_u32 s11, 16"); a("s_cbranch_scc1 L_epi0")
    if os.environ.get("KD"): a("s_branch L_epi0")
    a("s_mov_b32 s62, 0")
    a("s_lshl_b32 s63, s2, 7"); a(f"s_add_u32 s63, s63, {WS_MB + 4}")
    a("L_cnt:")
    a("s_load_dword s56, s[8:9], s63 glc")
    a("s_waitcnt lgkmcnt(0)")
    a("s_cmp_eq_u32 s56, 1")
    a("s_cbranch_scc1 L_epi0")
    a("L_cnt_retry:")
    a("s_sleep 32")
    a("s_add_u32 s62, s62, 1")
    a(f"s_cmp_lt_u32 s62, {SPIN}")
    a("s_cbranch_scc1 L_cnt")
    a("s_branch L_epi0")

    a("L_wts:")
    a("s_cmp_ge_u32 s11, 30"); a("s_cbranch_scc1 L_epi")
    if os.environ.get("NODMA"): a("s_branch L_epi")
    PLW = PLG
    NPUB = 64 - PLW + 1 - WK
    a("s_mov_b32 s62, 0")
    a("L_wtp:")
    a(f"ds_read_b32 v10, v9 offset:{L_FLG + 4 if DYN else L_FLG + 8*((NPUB-1) % NSL)}")
    a("s_waitcnt lgkmcnt(0)")
    a("v_readfirstlane_b32 s56, v10")
    a("s_mov_b32 s66, s56")
    a("s_cmp_lt_u32 s56, 0x7fffffff" if DYN else f"s_cmp_ge_u32 s56, {NPUB}")
    a("s_cbranch_scc1 L_wtg")
    a(f"s_sleep {WSL}")
    a("s_add_u32 s62, s62, 1")
    a(f"s_cmp_lt_u32 s62, {SPIN*16}")
    a("s_cbranch_scc1 L_wtp")
    a("L_wtg:")
    a("s_cmp_ge_u32 s11, 16"); a("s_cbranch_scc1 L_wf")
    if "o" in WL: lds_wait("po", L_PST, 2)
    a("v_lshrrev_b32 v4, 2, v1")
    a("v_lshlrev_b32 v4, 10, v4")
    a("v_and_b32 v5, 3, v1")
    a("v_lshl_add_u32 v4, v5, 4, v4")
    a("s_lshl_b32 s60, s10, 19"); a("s_lshl_b32 s57, s11, 6"); a("s_add_u32 s60, s60, s57")
    for c in range(2):
        if DYN:
            a("s_and_b32 s66, s66, 0xff")
            a("s_mul_i32 s57, s66, 57"); a("s_lshr_b32 s57, s57, 9"); a("s_mul_i32 s57, s57, 9"); a("s_sub_u32 s57, s66, s57")
            a("s_lshl_b32 s56, s57, 2"); a("v_mov_b32 v9, s56")
            a(f"s_sub_u32 s67, s66, {NSL - 1}")
            lds_wait(f"wo{c}", L_FREE, "s67")
            a("v_mov_b32 v9, 0")
            a("s_lshl_b32 s57, s57, 14"); a(f"s_add_u32 s57, s57, {L_RING}")
            a("s_add_u32 s67, s57, 16384")
            a("s_add_u32 s66, s66, 1")
        else:
            lds_wait(f"wo{c}", L_FREE + 4*(WS0 + c), 64 + c - (NSL - 1))
            a(f"s_mov_b32 s57, {L_W1 + 16384*c}")
        a(f"LN_wo{c}:")
        for n in range(4):
            a("s_mov_b32 m0, s57")
            a(f"buffer_load_dwordx4 v4, s[{sW1}:{sW1+3}], s60 offen{DNT} lds")
            a("s_add_u32 s60, s60, 16384"); a("s_add_u32 s57, s57, 1024")
        a("s_cmp_lt_u32 s57, s67" if DYN else f"s_cmp_lt_u32 s57, {L_W1 + 16384*(c+1)}")
        a(f"s_cbranch_scc1 LN_wo{c}")
    a("s_branch L_epi1")
    a("L_wf:")
    if "f" in WL: lds_wait("pf", L_PST, 2)
    a("v_lshrrev_b32 v4, 1, v1")
    a("s_movk_i32 s56, 3584")
    a("v_mul_lo_u32 v4, v4, s56")
    a("v_and_b32 v5, 1, v1")
    a("v_lshl_add_u32 v4, v5, 4, v4")
    a("v_lshlrev_b32 v6, 4, v1")
    for c in range(3):
        if DYN: assert "f" in WL
        else: lds_wait(f"wf{c}", L_FREE + 4*(WS0 + c), 64 + c - (NSL - 1))
        a(f"s_lshl_b32 s60, s15, {5 if c < 2 else 14}")
        a(f"s_mov_b32 s57, {L_W1 + 16384*c}")
        a(f"LN_wf{c}:")
        for n in range(4):
            a("s_mov_b32 m0, s57")
            a(f"buffer_load_dwordx4 v{4 if c < 2 else 6}, s[{sW1+4*c}:{sW1+4*c+3}], s60 offen{DNT} lds")
            a(f"s_add_u32 s60, s60, {32*3584 if c < 2 else 1024}"); a("s_add_u32 s57, s57, 1024")
        a(f"s_cmp_lt_u32 s57, {L_W1 + 16384*(c+1)}")
        a(f"s_cbranch_scc1 LN_wf{c}")
    a("s_branch L_epi1")

    sI, sIDX, sCTO = 64, 65, 66
    if DYN:
        a("L_claimer:")
        a(f"s_lshr_b32 s{sCTO}, s14, 3"); a(f"s_lshl_b32 s{sCTO}, s{sCTO}, 7"); a(f"s_add_u32 s{sCTO}, s{sCTO}, {WS_CT}")
        a(f"s_mov_b32 s{sI}, {S0}")
        a("v_mov_b32 v9, 0")
        a("s_mov_b32 s68, 0"); a("s_mov_b32 s69, 0")
        a("L_cl:")
        a(f"ds_read_b32 v10, v9 offset:{L_PROG}")
        a("s_waitcnt lgkmcnt(0)")
        a("v_readfirstlane_b32 s56, v10")
        a(f"s_add_u32 s56, s56, {LA}")
        a(f"s_sub_i32 s63, s56, s{sI}")
        a(f"s_cmp_ge_i32 s63, {CMIN}")
        a("s_cbranch_scc1 L_clgo")
        a("s_sleep 2")
        a("s_add_u32 s68, s68, 1")
        a(f"s_cmp_lt_u32 s68, {SPIN*16}")
        a("s_cbranch_scc1 L_cl")
        a("s_branch L_epi")
        a("L_clgo:")
        D = 64 - S0
        def put(cnt, base, sign):
            a(f"v_add_u32 v12, s{sI}, v1")
            a("v_and_b32 v11, 15, v12")
            a("v_lshlrev_b32 v11, 2, v11")
            a("v_lshlrev_b32 v12, 16, v12")
            a("v_add_u32 v12, v12, v1" if sign > 0 else "v_sub_u32 v12, v12, v1")
            a(f"v_add_u32 v12, {base}, v12")
            a(f"s_lshl_b32 s56, 1, {cnt}"); a("s_sub_u32 s56, s56, 1"); a("s_mov_b32 s57, 0")
            a("s_mov_b64 exec, s[56:57]")
            a(f"ds_write_b32 v11, v12 offset:{L_CLM}")
            a("s_mov_b64 exec, -1")
            a(f"s_add_u32 s{sI}, s{sI}, {cnt}")
        a("s_cmp_lg_u32 s69, 0"); a("s_cbranch_scc1 L_steal")
        a("s_mov_b32 s62, s63")
        a("s_lshl_b32 s56, s13, 2"); a(f"s_add_u32 s56, s56, s{sCTO}")
        a("s_atomic_add s62, s[8:9], s56 glc")
        a("s_waitcnt lgkmcnt(0)")
        a("s_add_u32 s62, s62, 1")
        a("s_and_b32 s70, s62, 0xffff"); a("s_lshr_b32 s71, s62, 16")
        a(f"s_sub_i32 s71, {D}, s71"); a("s_sub_i32 s71, s71, s70")
        a("s_max_i32 s71, s71, 0")
        a("s_cmp_lt_i32 s71, s63"); a("s_cselect_b32 s69, 1, 0")
        a("s_min_i32 s71, s71, s63")
        a("s_lshl_b32 s72, s13, 6"); a("s_add_u32 s72, s72, s70"); a(f"s_add_u32 s72, s72, {S0}")
        put("s71", "s72", 1)
        a("s_branch L_cl")
        a("L_steal:")
        a(f"s_load_dwordx8 s[72:79], s[8:9], s{sCTO} glc")
        a("s_mov_b32 s70, -1")
        a("s_waitcnt lgkmcnt(0)")
        for k in range(8):
            a(f"s_add_u32 s56, s{72+k}, 1")
            a("s_and_b32 s57, s56, 0xffff"); a("s_lshr_b32 s56, s56, 16"); a("s_add_u32 s56, s56, s57")
            a("s_lshl_b32 s56, s56, 3"); a(f"s_or_b32 s56, s56, {k}")
            a("s_min_u32 s70, s70, s56")
        a(f"s_cmp_gt_u32 s70, {((D - MST) << 3) | 7}")
        a("s_cbranch_scc1 L_clend")
        a("s_and_b32 s70, s70, 7")
        a("s_lshl_b32 s56, s70, 2"); a(f"s_add_u32 s56, s56, s{sCTO}")
        a(f"s_mov_b32 s62, {KST << 16}")
        a("s_atomic_add s62, s[8:9], s56 glc")
        a("s_waitcnt lgkmcnt(0)")
        a("s_add_u32 s62, s62, 1")
        a("s_and_b32 s72, s62, 0xffff"); a("s_lshr_b32 s73, s62, 16")
        a(f"s_sub_i32 s71, {D}, s73"); a("s_sub_i32 s71, s71, s72")
        a("s_max_i32 s71, s71, 0"); a(f"s_min_i32 s71, s71, {KST}")
        a("s_lshl_b32 s72, s70, 6"); a("s_add_u32 s72, s72, 63"); a("s_sub_u32 s72, s72, s73")
        put("s71", "s72", -1)
        a("s_add_u32 s68, s68, 1")
        a(f"s_cmp_lt_u32 s68, {SPIN*16}")
        a("s_cbranch_scc1 L_cl")
        a("L_clend:")
        a("s_movk_i32 s72, 0x4000")
        put(1, "s72", 1)
        a("s_branch L_epi")

    a("L_loader:")
    if not os.environ.get("NOPRIO"): a("s_setprio 3")
    a("v_xor_b32 v7, v2, v3")
    a("v_lshlrev_b32 v5, 8, v3")
    a(f"v_lshl_add_u32 v{vDK}, v7, 4, v5")
    for u in range(1, 4):
        a(f"v_xor_b32 v{vDK+u}, {u<<6:#x}, v{vDK}")
    a("v_lshlrev_b32 v4, 1, v3")
    a("v_xor_b32 v4, v2, v4")
    a(f"v_lshl_add_u32 v{vDV}, v4, 4, v5")
    a(f"v_xor_b32 v{vDV+1}, 0x80, v{vDV}")
    if NOSW:
        for r in range(6): a(f"v_mov_b32 v{vDK+r}, v6")
    a(f"s_lshr_b32 s70, s14, 3"); a(f"s_mul_i32 s70, s70, {ROT}")
    PL = PLG
    sSL, sPS, sFE = 71, 72, 73
    def pub(sval):
        a(f"v_mov_b32 v10, {sval}")
        a(f"v_mov_b32 v13, s{sPS}")
        a("s_mov_b64 exec, 1")
        a(f"ds_write_b32 v13, v10 offset:{L_FLG}")
        a("s_mov_b64 exec, -1")
        a(f"s_add_u32 s{sPS}, s{sPS}, 8")
        a(f"s_cmp_eq_u32 s{sPS}, {8*NSL}")
        a(f"s_cselect_b32 s{sPS}, 0, s{sPS}")
    def fetch_flags():
        a(f"v_mov_b32 v11, s{sFE}")
        a(f"ds_read_b32 v14, v11 offset:{L_FREE}")
        if DYN:
            a(f"s_and_b32 s56, s{sI}, 15"); a("s_lshl_b32 s56, s56, 2")
            a("v_mov_b32 v12, s56")
            a(f"ds_read_b32 v15, v12 offset:{L_CLM}")
    a(f"s_lshl_b32 s{sIDX}, s13, 6" if CONT else f"s_mov_b32 s{sIDX}, s13")
    a(f"s_mov_b32 s{sI}, 0"); a(f"s_mov_b32 s{sSL}, {L_RING}"); a(f"s_mov_b32 s{sPS}, 0"); a(f"s_mov_b32 s{sFE}, 0")
    a("s_mov_b32 s69, 0"); a("s_mov_b32 s74, 0"); a("v_mov_b32 v20, 0")
    lstamp(a, 1)
    fetch_flags()
    a("LN_ld:")
    a(f"s_sub_u32 s67, s{sI}, {NSL-1}")
    a("s_waitcnt lgkmcnt(0)")
    a("v_readfirstlane_b32 s56, v14")
    if STAMP:
        a(f"s_sub_u32 s76, s{sI}, 1"); a("s_and_b32 m0, s76, 63")
        a("v_writelane_b32 v20, s74, m0")
    if DYN:
        a("v_readfirstlane_b32 s57, v15")
        a(f"s_cmp_lt_u32 s{sI}, {S0}")
        a("s_cbranch_scc1 LN_fs")
        a("s_lshr_b32 s63, s57, 16")
        a(f"s_cmp_lg_u32 s63, s{sI}")
        a("s_cbranch_scc1 LN_fr")
        a(f"s_and_b32 s57, s57, 0xffff")
        a("s_cmp_ge_u32 s57, 512")
        a("s_cbranch_scc1 L_ldend")
        a(f"s_mov_b32 s{sIDX}, s57")
        a("LN_fs:")
    if NB0: a(f"s_cmp_lt_u32 s{sI}, {NB0}"); a("s_cbranch_scc1 LN_fg")
    if not DYN:
        a(f"s_cmp_ge_u32 s{sI}, 64")
        a("s_cbranch_scc1 L_ldend")
    a("s_cmp_eq_u32 s56, s67")
    a("s_cbranch_scc1 LN_fg")
    a("LN_fr:")
    a("s_sleep 1")
    fetch_flags()
    a("s_add_u32 s69, s69, 1")
    a(f"s_cmp_lt_u32 s69, {SPIN*16}")
    a("s_cbranch_scc1 LN_ld")
    a("s_branch L_ldend")
    a("LN_fg:")
    a(f"s_lshl_b32 s56, s{sIDX}, 13")
    a("s_add_u32 s57, s56, 4096")
    a(f"s_waitcnt vmcnt({THR})")
    if STAMP: a("s_memrealtime s[74:75]")
    for kv in range(2):
        if kv == 1 and HALF: a(f"s_waitcnt vmcnt({THR})")
        for h in range(2):
            a(f"s_add_u32 m0, s{sSL}, {kv*8192 + h*4096}")
            for qq in range(4):
                q = 4*h + qq
                vo = vDK + (q >> 1) if kv == 0 else vDV + ((q >> 1) & 1)
                sr = sK if kv == 0 else sV
                a(f"buffer_load_dwordx4 v{vo}, s[{sr}:{sr+3}], s{56+h} offen offset:{1024*qq}{NT} lds")
    a(f"s_add_u32 s{sIDX}, s{sIDX}, {1 if CONT else 8}")
    a(f"s_add_u32 s{sSL}, s{sSL}, 16384"); a(f"s_add_u32 s{sFE}, s{sFE}, 4")
    a(f"s_cmp_eq_u32 s{sFE}, {4*NSL}")
    a(f"s_cselect_b32 s{sFE}, 0, s{sFE}"); a(f"s_cselect_b32 s{sSL}, {L_RING}, s{sSL}")
    a(f"s_cmp_lt_u32 s{sI}, {PL}")
    a("s_cbranch_scc1 LN_np")
    a(f"s_sub_u32 s67, s{sI}, {PL - 1}")
    pub("s67")
    a("LN_np:")
    a(f"s_add_u32 s{sI}, s{sI}, 1")
    if NB0:
        assert NB0 <= PL
        a(f"s_cmp_lg_u32 s{sI}, {NB0}"); a("s_cbranch_scc1 LN_nb")
        a("s_barrier")
        a("LN_nb:")
    if DYN:
        a(f"v_mov_b32 v10, s{sI}")
        a("s_mov_b64 exec, 1")
        a(f"ds_write_b32 v9, v10 offset:{L_PROG}")
        a("s_mov_b64 exec, -1")
    fetch_flags()
    if STAMP:
        a(f"s_cmp_lg_u32 s{sI}, 30"); a("s_cbranch_scc1 LN_nomid")
        lstamp(a, 5)
        a("LN_nomid:")
    if STAMP:
        a(f"s_cmp_lg_u32 s{sI}, 9"); a("s_cbranch_scc1 LN_ld")
        lstamp(a, 2)
    a("s_branch LN_ld")
    a("L_ldend:")
    a.dry = True
    lstamp(a, 3)
    if STAMP:
        a("v_mov_b32 v10, s69")
        a(f"ds_write_b32 v9, v10 offset:{L_STC}")
    a("v_lshlrev_b32 v11, 3, v1")
    a(f"v_mov_b32 v10, s{sI}")
    a(f"s_mov_b64 exec, {(1<<NSL)-1}")
    a(f"ds_write_b32 v11, v10 offset:{L_FLG + 4}")
    a("s_mov_b64 exec, -1")
    for r in range(PL, 0, -1):
        a(f"s_sub_u32 s67, s{sI}, {r - 1}")
        a(f"s_waitcnt vmcnt({16*(r-1)})")
        pub("s67")
    a("s_waitcnt lgkmcnt(0)")
    a.dry = False
    if DRY: a("s_cbranch_execz L_cdone")
    if STAMP:
        lstamp(a, 4)
        a("v_lshlrev_b32 v4, 2, v1")
        a("s_lshl_b32 s56, s2, 9"); a(f"s_add_u32 s56, s56, 0x1B0000")
        a(f"buffer_store_dword v20, v4, s[{sWS}:{sWS+3}], s56 offen")
        a("s_lshl_b32 s56, s2, 6"); a(f"s_add_u32 s56, s56, {WS_TS + 0x4000}")
        a("s_mov_b64 exec, 0xffff")
        a(f"buffer_store_dword v{vST}, v4, s[{sWS}:{sWS+3}], s56 offen")
    a("s_endpgm")

    a("L_cons:")
    a("v_and_b32 v7, 3, v2")
    a("v_lshlrev_b32 v7, 8, v7")
    a("v_lshl_add_u32 v7, v3, 4, v7")
    lds_wait("c", L_QCNT, 8)
    for t in range(4):
        a(f"ds_read_b128 v[{vQ+4*t}:{vQ+4*t+3}], v7 offset:{L_QL + 64*t}")
    a(f"s_mov_b32 s{sN}, s{sC}")
    a(f"s_mov_b32 s64, s{sC}")
    def cbody(first):
        for tb in range(2):
            for t in range(4):
                r = vKD + 16*tb + 4*t
                if not first: a(f"ds_read_b128 v[{r}:{r+3}], v{vKA+t} offset:{1024*tb}")
        for T in range(3):
            for hh in range(2):
                r = vVD + 4*T + 2*hh
                if not first: a(f"ds_read_b64_tr_b16 v[{r}:{r+1}], v{vVA+T} offset:{8192 + 1024*hh}")
        a("s_waitcnt lgkmcnt(0)" if first else "s_waitcnt lgkmcnt(10)")
        for tb in range(2):
            d = vS + 4*tb
            if tb == 1 and not first: a("s_waitcnt lgkmcnt(6)")
            for t in range(4):
                r = vKD + 16*tb + 4*t
                c = "0" if t == 0 else f"v[{d}:{d+3}]"
                a(f"v_mfma_f32_16x16x32_bf16 v[{d}:{d+3}], v[{r}:{r+3}], v[{vQ+4*t}:{vQ+4*t+3}], {c}")
        for T in range(3, 8):
            if T == 7 and not first: a("s_waitcnt lgkmcnt(8)")
            for hh in range(2):
                r = vVD + 4*T + 2*hh
                if not first: a(f"ds_read_b64_tr_b16 v[{r}:{r+1}], v{vVA+T} offset:{8192 + 1024*hh}")
        a(f"s_lshl_b32 s56, s64, 2")
        a(f"v_mov_b32 v{vF}, s56")
        a(f"s_add_u32 s65, s{sN}, 1")
        a(f"v_mov_b32 v{vF+1}, s65")
        a("s_add_u32 s64, s64, 4")
        a("s_mov_b32 s66, 65536")
        a(f"s_cmp_ge_u32 s64, {NSL}")
        a(f"s_cselect_b32 s66, {65536 - NSL*16384}, s66")
        a(f"s_cselect_b32 s57, {NSL}, 0")
        a("s_sub_u32 s64, s64, s57")
        for p in range(4):
            s0, s1 = vS + 2*p, vS + 2*p + 1
            a(f"v_cvt_pk_bf16_f32 v{vT}, v{s0}, v{s1}")
            a(f"v_lshlrev_b32 v{s0}, 16, v{vT}")
            a(f"v_and_b32 v{s1}, 0xffff0000, v{vT}")
            a(f"v_mul_f32 v{s0}, s{sSC}, v{s0}")
            a(f"v_mul_f32 v{s1}, s{sSC}, v{s1}")
            a(f"v_cvt_pk_bf16_f32 v{vT}, v{s0}, v{s1}")
            a(f"v_lshlrev_b32 v{s0}, 16, v{vT}")
            a(f"v_and_b32 v{s1}, 0xffff0000, v{vT}")
            a(f"v_max3_f32 v{vM+1}, v{s0}, v{s1}, v{vM if p == 0 else vM+1}")
        a(f"v_mov_b32 v{vM+3}, v{vM+1}")
        a(f"v_permlane16_swap_b32 v{vM+1}, v{vM+3}")
        a(f"v_max_f32 v{vM+1}, v{vM+1}, v{vM+3}")
        a(f"v_mov_b32 v{vM+3}, v{vM+1}")
        a(f"v_permlane32_swap_b32 v{vM+1}, v{vM+3}")
        a(f"v_max_f32 v{vM+1}, v{vM+1}, v{vM+3}")
        if not first:
            a("s_waitcnt lgkmcnt(0)")
            a("s_mov_b64 exec, 1")
            a(f"ds_write_b32 v{vF}, v{vF+1} offset:{L_FREE}")
            a("s_mov_b64 exec, -1")
            for r in range(12):
                a(f"v_add_u32 v{vKA+r}, s66, v{vKA+r}")
        a(f"v_cmp_lt_f32 vcc, v{vM}, v{vM+1}")
        a("s_cmp_eq_u64 vcc, 0")
        a("s_cbranch_scc1 L_nores" + ("1" if first else ""))
        a(f"v_sub_f32 v{vM+3}, v{vM}, v{vM+1}")
        a(f"v_mul_f32 v{vM+3}, s{sL2}, v{vM+3}")
        a(f"v_exp_f32 v{vM+3}, v{vM+3}")
        a(f"v_mov_b32 v{vM}, v{vM+1}")
        a(f"v_mul_f32 v{vM+4}, s{sL2}, v{vM+1}")
        a(f"v_mul_f32 v{vM+2}, v{vM+3}, v{vM+2}")
        for r in range(32):
            a(f"v_mul_f32 v{vA+r}, v{vM+3}, v{vA+r}")
        a("L_nores" + ("1" if first else "") + ":")
        for i in range(8):
            s0 = vS + i
            a(f"v_fma_f32 v{s0}, v{s0}, s{sL2}, -v{vM+4}")
            a(f"v_exp_f32 v{s0}, v{s0}")
            a(f"v_add_f32 v{vM+2}, v{vM+2}, v{s0}")
        for p in range(4):
            a(f"v_cvt_pk_bf16_f32 v{vP+p}, v{vS+2*p}, v{vS+2*p+1}")
        for T in range(8):
            acc = vA + 4*T
            a(f"v_mfma_f32_16x16x32_bf16 v[{acc}:{acc+3}], v[{vVD+4*T}:{vVD+4*T+3}], v[{vP}:{vP+3}], v[{acc}:{acc+3}]")
    if PRR:
        cbody(True)
        a(f"s_add_u32 s{sN}, s{sN}, 4")
    a("L_poll:")
    a(f"s_lshl_b32 s56, s64, 3")
    a(f"v_mov_b32 v{vF}, s56")
    a(f"s_add_u32 s65, s{sN}, 1")
    a("s_mov_b32 s62, 0")
    a("L_poll1:")
    a(f"ds_read_b64 v[{vT}:{vT+1}], v{vF} offset:{L_FLG}")
    a("s_waitcnt lgkmcnt(0)")
    a(f"v_readfirstlane_b32 s56, v{vT}")
    a(f"v_readfirstlane_b32 s67, v{vT+1}")
    a("s_cmp_eq_u32 s56, s65")
    a("s_cbranch_scc1 L_go")
    a(f"s_cmp_ge_u32 s{sN}, s67")
    a("s_cbranch_scc1 L_cdone")
    a("s_sleep 1")
    a("s_add_u32 s62, s62, 1")
    a(f"s_cmp_lt_u32 s62, {SPIN*16}")
    a("s_cbranch_scc1 L_poll1")
    a("s_branch L_cdone")
    a("L_go:")
    cbody(False)
    a(f"s_add_u32 s{sN}, s{sN}, 4")
    a(f"s_cmp_lt_u32 s{sN}, s67")
    a("s_cbranch_scc1 L_poll")
    a("L_cdone:")
    a.dry = True
    a(f"v_mov_b32 v{vM+1}, v{vM+2}")
    a(f"v_permlane16_swap_b32 v{vM+2}, v{vM+1}")
    a(f"v_add_f32 v{vM+2}, v{vM+2}, v{vM+1}")
    a(f"v_mov_b32 v{vM+1}, v{vM+2}")
    a(f"v_permlane32_swap_b32 v{vM+2}, v{vM+1}")
    a(f"v_add_f32 v{vM+1}, v{vM+2}, v{vM+1}")
    a(f"s_lshl_b32 s56, s{sC}, 11")
    a("v_lshlrev_b32 v6, 9, v2")
    a("v_lshl_add_u32 v6, v3, 4, v6")
    a("v_add_u32 v6, s56, v6")
    a(f"s_lshl_b32 s57, s{sC}, 3")
    a("v_lshlrev_b32 v7, 6, v2")
    a("v_add_u32 v7, s57, v7")
    a("v_cmp_gt_u32 vcc, 4, v2")
    a("s_and_saveexec_b64 s[58:59], vcc")
    for e in range(8):
        acc = vA + 4*e
        a(f"ds_write_b128 v6, v[{acc}:{acc+3}] offset:{L_O + e*64}")
    a(f"ds_write_b64 v7, v[{vM}:{vM+1}] offset:{L_ML}")
    a("s_mov_b64 exec, s[58:59]")
    a("v_mov_b32 v9, 0")
    a("L_epi0:")
    if NB: lds_inc(L_DONE)
    a("L_epi:")
    a("s_waitcnt vmcnt(0)")
    a("L_epi1:")
    if NB:
        lds_wait("e", L_DONE, 5)
    else:
        a("s_waitcnt lgkmcnt(0)")
        a("s_barrier")
    stamp_n[0] = 4
    stamp(a)
    if STAMP:
        a("v_mov_b32 v6, 0")
        a(f"ds_read_b32 v6, v6 offset:{L_FLG+4}")
        a("s_waitcnt lgkmcnt(0)")
        a("v_readfirstlane_b32 s56, v6")
        a(f"v_writelane_b32 v{vST}, s56, 14")
        a("v_mov_b32 v6, 0")
        a(f"ds_read_b32 v6, v6 offset:{L_STC}")
        a("s_waitcnt lgkmcnt(0)")
        a("v_readfirstlane_b32 s56, v6")
        a(f"v_writelane_b32 v{vST}, s56, 3")
    a("s_cmp_ge_u32 s3, 2")
    a("s_cbranch_scc1 L_role")
    a("v_lshrrev_b32 v6, 5, v0")
    a("v_lshlrev_b32 v8, 6, v6")
    for i in range(2):
        a(f"ds_read_b128 v[{24+4*i}:{24+4*i+3}], v8 offset:{L_ML + 16*i}")
    a("v_lshlrev_b32 v9, 4, v0")
    for w in range(4):
        a(f"ds_read_b128 v[{40+4*w}:{43+4*w}], v9 offset:{L_O + w*2048}")
    a("s_waitcnt lgkmcnt(4)")
    a("v_max_f32 v10, v24, v26")
    a("v_max3_f32 v10, v28, v30, v10")
    a("v_mov_b32 v11, 0")
    for w in range(4):
        a(f"v_sub_f32 v{24+2*w}, v{24+2*w}, v10")
        a(f"v_mul_f32 v{24+2*w}, s{sL2}, v{24+2*w}")
        a(f"v_exp_f32 v{24+2*w}, v{24+2*w}")
        a(f"v_fmac_f32 v11, v{24+2*w}, v{25+2*w}")
    a("s_waitcnt lgkmcnt(0)")
    for c in range(4):
        a(f"v_mul_f32 v{12+c}, v24, v{40+c}")
    for w in range(1, 4):
        for c in range(4):
            a(f"v_fmac_f32 v{12+c}, v{24+2*w}, v{40+4*w+c}")
    for r in (10, 11, 12, 13, 14, 15):
        a(f"v_min_u32 v{r}, -2, v{r}")
    a("s_lshl_b32 s56, s14, 11"); a(f"s_add_u32 s56, s56, {WS_PO}")
    a(f"buffer_store_dwordx4 v[12:15], v9, s[{sWS}:{sWS+3}], s56 offen sc1")
    a("s_lshl_b32 s56, s14, 5"); a(f"s_add_u32 s56, s56, {WS_ML}")
    a("v_lshlrev_b32 v8, 3, v6")
    a("v_and_b32 v7, 31, v0")
    a("v_cmp_eq_u32 vcc, 0, v7")
    a("s_and_saveexec_b64 s[58:59], vcc")
    a(f"buffer_store_dwordx2 v[10:11], v8, s[{sWS}:{sWS+3}], s56 offen sc1")
    a("s_mov_b64 exec, s[58:59]")
    if WL:
        a("v_mov_b32 v9, 0")
        a("v_mov_b32 v16, 1")
        a("s_mov_b64 exec, 1")
        a(f"ds_add_u32 v9, v16 offset:{L_PST}")
        a("s_mov_b64 exec, -1")
    a("L_role:")
    stamp(a)
    if os.environ.get("NOTAIL"): a("s_branch L_fin")
    a("s_cmp_ge_u32 s11, 30"); a("s_cbranch_scc1 L_Z")
    a("s_cmp_ge_u32 s11, 16"); a("s_cbranch_scc1 L_F")

    a("v_lshrrev_b32 v6, 7, v0")
    a("v_and_b32 v7, 127, v0")
    a("v_lshlrev_b32 v16, 14, v6")
    a("v_lshl_add_u32 v16, v7, 4, v16")
    a("v_lshlrev_b32 v17, 8, v6")
    a("v_lshrrev_b32 v18, 5, v7")
    a("v_lshl_add_u32 v17, v18, 3, v17")
    a("s_lshl_b32 s63, s10, 10"); a(f"s_add_u32 s63, s63, {WS_ML}")
    if DYN:
        a("v_mov_b32 v9, 0")
        a(f"ds_read_b32 v10, v9 offset:{L_FLG + 4}")
        gemv_addr(a, 76, 77, L_RING, L_XN, rowsh=6)
        a("s_waitcnt lgkmcnt(0)")
        a("v_readfirstlane_b32 s66, v10")
        a("s_lshr_b32 s67, s3, 2")
        a("s_add_u32 s66, s66, s67"); a("s_and_b32 s66, s66, 0xff")
        a("s_mul_i32 s57, s66, 57"); a("s_lshr_b32 s57, s57, 9"); a("s_mul_i32 s57, s57, 9"); a("s_sub_u32 s57, s66, s57")
        a("s_sub_u32 s57, s57, s67"); a("s_lshl_b32 s57, s57, 14")
        a("v_add_u32 v76, s57, v76")
    else:
        gemv_addr(a, 76, 77, L_W1, L_XN, rowsh=6)
    a("s_mov_b32 s62, 0")
    if "o" in SG:
        a("v_lshlrev_b32 v19, 8, v6")
        a("v_and_b32 v18, 7, v1")
        a("v_lshl_add_u32 v19, v18, 5, v19")
        a("s_lshl_b32 s60, s10, 16"); a(f"s_add_u32 s60, s60, {WS_PO}")
        def ld(s):
            a(f"s_add_u32 s57, s60, {4096*(s>>1)}")
            a(f"buffer_load_dwordx4 v[{36+4*s}:{39+4*s}], v16, s[{sWS}:{sWS+3}], s57 offen offset:{2048*(s%2)} sc1")
            a(f"buffer_load_dwordx2 v[{20+2*s}:{21+2*s}], v17, s[{sWS}:{sWS+3}], s63 offen offset:{32*s} sc1")
        gather(a, "ao", lambda: a(f"buffer_load_dwordx4 v[68:71], v19, s[{sWS}:{sWS+3}], s63 offen sc1"), range(68, 72), ld,
               lambda s: list(range(36+4*s, 40+4*s)) + [20+2*s, 21+2*s])
    else:
        if "o" in LP:
            a("v_lshlrev_b32 v19, 8, v6")
            a("v_lshl_add_u32 v19, v2, 4, v19")
            a("s_mov_b32 s60, s63")
            if "o" in PP:
                ppoll(a, "o", NPP, 1, lambda k: a(f"buffer_load_dwordx4 v[{80+4*k}:{83+4*k}], v19, s[{sWS}:{sWS+3}], s63 offen sc1"),
                      lambda k: range(80+4*k, 84+4*k), GAP)
            else:
                if "o" in SW:
                    a("v_mov_b32 v9, 0")
                    a("v_lshlrev_b32 v19, 4, v1")
                    a("s_cmp_lg_u32 s3, 2"); a("s_cbranch_scc1 L_ow")
                a("L_o1:")
                a(f"buffer_load_dwordx4 v[20:23], v19, s[{sWS}:{sWS+3}], s63 offen sc1")
                a("s_waitcnt vmcnt(0)")
                sent_check(a, range(20, 24), 10)
                poll_tail(a, "L_o1", sleep=PS)
                if "o" in SW:
                    lds_inc(L_PF)
                    a("L_ow:")
                    lds_wait("ow", L_PF, 1)
        else:
            a("L_o1:")
            for s in range(8):
                a(f"buffer_load_dwordx2 v[{20+2*s}:{21+2*s}], v17, s[{sWS}:{sWS+3}], s63 offen offset:{32*s} sc1")
            a("s_waitcnt vmcnt(0)")
            sent_check(a, range(20, 36), 10)
            poll_tail(a, "L_o1")
        a("s_mov_b32 s62, 0")
        a("L_o2:")
        a("s_lshl_b32 s63, s10, 16"); a(f"s_add_u32 s63, s63, {WS_PO}")
        for s in range(8):
            if s % 2 == 0 and s > 0:
                a("s_add_u32 s63, s63, 4096")
            a(f"buffer_load_dwordx4 v[{36+4*s}:{39+4*s}], v16, s[{sWS}:{sWS+3}], s63 offen offset:{2048*(s%2)} sc1")
        if "o" in LP:
            for s in range(8):
                a(f"buffer_load_dwordx2 v[{20+2*s}:{21+2*s}], v17, s[{sWS}:{sWS+3}], s60 offen offset:{32*s} sc1")
        a("s_waitcnt vmcnt(0)")
        sent_check(a, range(20 if "o" in LP else 36, 68), 10)
        poll_tail(a, "L_o2")
    stamp(a)
    a("v_max_f32 v10, v20, v22")
    for s in range(2, 8):
        a(f"v_max_f32 v10, v10, v{20+2*s}")
    a("v_mov_b32 v11, 0")
    for s in range(8):
        a(f"v_sub_f32 v{20+2*s}, v{20+2*s}, v10")
        a(f"v_mul_f32 v{20+2*s}, s{sL2}, v{20+2*s}")
        a(f"v_exp_f32 v{20+2*s}, v{20+2*s}")
        a(f"v_fmac_f32 v11, v{20+2*s}, v{21+2*s}")
    for c in range(4):
        a(f"v_mul_f32 v{12+c}, v20, v{36+c}")
    for s in range(1, 8):
        for c in range(4):
            a(f"v_fmac_f32 v{12+c}, v{20+2*s}, v{36+4*s+c}")
    a("v_rcp_f32 v10, v11")
    for c in range(4):
        a(f"v_mul_f32 v18, v{12+c}, v10")
        a(f"v_fma_f32 v19, -v18, v11, v{12+c}")
        a(f"v_fma_f32 v{12+c}, v19, v10, v18")
    a("v_cvt_pk_bf16_f32 v12, v12, v13")
    a("v_cvt_pk_bf16_f32 v13, v14, v15")
    a("v_lshlrev_b32 v10, 3, v0")
    a(f"ds_write_b64 v10, v[12:13] offset:{L_XN}")
    a("s_waitcnt lgkmcnt(0)")
    a("s_barrier")
    if os.environ.get("TS"): stamp(a, 10)
    if "o" in TT:
        gemv_w(a, 76, 80, 32, 64); gemv_m(a, (36, 56), 77, 80)
    else:
        gemv_wave(a, 36, 76, 77, 40, woff=0, rowb=64)
        gemv_wave(a, 56, 76, 77, 60, woff=32, rowb=64)
    a("s_lshl_b32 s56, s3, 9"); a(f"s_add_u32 s56, s56, {L_RED}")
    a("v_lshlrev_b32 v4, 7, v2")
    a("v_lshl_add_u32 v4, v3, 4, v4")
    a("v_add_u32 v4, s56, v4")
    a("v_cmp_gt_u32 vcc, 4, v2")
    a("s_and_saveexec_b64 s[58:59], vcc")
    a("ds_write_b128 v4, v[36:39]")
    a("ds_write_b128 v4, v[56:59] offset:64")
    a("s_mov_b64 exec, s[58:59]")
    a("s_waitcnt lgkmcnt(0)")
    a("s_barrier")
    if os.environ.get("TS"): stamp(a, 11)
    a("s_cmp_lg_u32 s3, 0")
    a("s_cbranch_scc1 L_fin")
    a("v_and_b32 v5, 31, v1")
    a("v_lshlrev_b32 v4, 4, v5")
    for w in range(8):
        a(f"ds_read_b128 v[{8+4*w}:{11+4*w}], v4 offset:{L_RED + w*512}")
    a("v_lshrrev_b32 v4, 3, v5"); a("v_lshlrev_b32 v4, 11, v4")
    a("v_and_b32 v5, 7, v5"); a("v_lshl_add_u32 v4, v5, 4, v4")
    a("s_lshl_b32 s56, s10, 13"); a("s_lshl_b32 s57, s11, 7"); a("s_add_u32 s56, s56, s57"); a(f"s_add_u32 s56, s56, {WS_AO}")
    a("s_waitcnt lgkmcnt(0)")
    for w in range(1, 8):
        for c in range(4):
            a(f"v_add_f32 v{8+c}, v{8+c}, v{8+4*w+c}")
    for c in range(4):
        a(f"v_min_u32 v{8+c}, -2, v{8+c}")
    a("s_mov_b32 exec_lo, -1"); a("s_mov_b32 exec_hi, 0")
    a(f"buffer_store_dwordx4 v[8:11], v4, s[{sWS}:{sWS+3}], s56 offen sc1")
    a("s_mov_b64 exec, -1")
    a("s_branch L_fin")

    a("L_F:")
    a("v_lshlrev_b32 v16, 4, v0")
    a("v_lshlrev_b32 v17, 3, v0")
    a(f"buffer_load_dwordx2 v[18:19], v17, s[{sX}:{sX+3}], 0 offen")
    gemv_addr(a, 76, 77, L_W1, L_XN)
    if "f" in TT:
        a("v_and_b32 v5, 3, v2")
        a("v_lshlrev_b32 v79, 5, v5")
        a("v_lshl_add_u32 v79, v3, 3, v79")
        a("v_lshrrev_b32 v78, 2, v2")
        a("v_lshl_add_u32 v78, v3, 2, v78")
        a("v_lshlrev_b32 v78, 10, v78")
        a("v_lshl_add_u32 v78, v5, 3, v78")
        a("s_lshl_b32 s56, s3, 7"); a(f"s_add_u32 s56, s56, {L_W3}")
        a("v_add_u32 v78, s56, v78")
    a("s_and_b32 s63, s15, 7"); a("s_lshl_b32 s63, s63, 13"); a(f"s_add_u32 s63, s63, {WS_AO}")
    a("s_mov_b32 s62, 0")
    if "f" in SG:
        a("v_and_b32 v20, 7, v1"); a("v_lshlrev_b32 v20, 13, v20")
        a("s_and_b32 s63, s15, 7"); a("s_lshl_b32 s63, s63, 7"); a("s_lshl_b32 s56, s3, 10"); a("s_add_u32 s63, s63, s56")
        a(f"s_add_u32 s63, s63, {WS_AO}")
        def ld(k):
            a(f"s_mov_b32 s57, {WS_AO + 8192*k}")
            a(f"buffer_load_dwordx4 v[{36+4*k}:{39+4*k}], v16, s[{sWS}:{sWS+3}], s57 offen sc1")
        gather(a, "af", lambda: a(f"buffer_load_dword v68, v20, s[{sWS}:{sWS+3}], s63 offen sc1"), [68, 68], ld,
               lambda k: range(36+4*k, 40+4*k))
    else:
        if "f" in LP:
            a("v_and_b32 v20, 7, v1"); a("v_lshlrev_b32 v20, 13, v20")
            a("s_and_b32 s63, s15, 7"); a("s_lshl_b32 s63, s63, 7"); a("s_lshl_b32 s56, s3, 10"); a("s_add_u32 s63, s63, s56")
            a(f"s_add_u32 s63, s63, {WS_AO}")
            if "f" in PP:
                ppoll(a, "f", NPP, 1, lambda k: a(f"buffer_load_dword v{80+k}, v20, s[{sWS}:{sWS+3}], s63 offen sc1"),
                      lambda k: [80+k, 80+k], GAP)
            else:
                if "f" in SW:
                    a("v_mov_b32 v9, 0")
                    a("s_lshr_b32 s56, s15, 3"); a("s_and_b32 s56, s56, 7"); a("s_sub_u32 s56, s56, 2"); a("s_lshl_b32 s56, s56, 10"); a("s_add_u32 s63, s63, s56")
                    a("s_cmp_lg_u32 s3, 2"); a("s_cbranch_scc1 L_fw")
                a("L_f1:")
                a(f"buffer_load_dword v36, v20, s[{sWS}:{sWS+3}], s63 offen sc1")
                a("s_waitcnt vmcnt(0)")
                sent_check(a, [36, 36], 10)
                poll_tail(a, "L_f1", sleep=PS)
                if "f" in SW:
                    lds_inc(L_PF)
                    a("L_fw:")
                    lds_wait("fw", L_PF, 1)
        else:
            a("L_f1:")
            a(f"buffer_load_dwordx4 v[36:39], v16, s[{sWS}:{sWS+3}], s63 offen sc1")
            a("s_waitcnt vmcnt(0)")
            sent_check(a, range(36, 40), 10)
            poll_tail(a, "L_f1")
        a("s_mov_b32 s62, 0")
        a("L_f2:")
        a(f"s_mov_b32 s63, {WS_AO}")
        for k in range(8):
            a(f"buffer_load_dwordx4 v[{36+4*k}:{39+4*k}], v16, s[{sWS}:{sWS+3}], s63 offen sc1")
            if k < 7: a("s_add_u32 s63, s63, 8192")
        a("s_waitcnt vmcnt(0)")
        sent_check(a, range(36, 68), 10)
        poll_tail(a, "L_f2")
    stamp(a)
    for k in range(1, 8):
        for c in range(4):
            a(f"v_add_f32 v{36+c}, v{36+c}, v{36+4*k+c}")
    for c in range(4): rbf(a, 36+c)
    a("v_lshlrev_b32 v40, 16, v18"); a("v_and_b32 v41, 0xffff0000, v18")
    a("v_lshlrev_b32 v42, 16, v19"); a("v_and_b32 v43, 0xffff0000, v19")
    for c in range(4): a(f"v_add_f32 v{36+c}, v{36+c}, v{40+c}")
    a("v_cvt_pk_bf16_f32 v36, v36, v37")
    a("v_cvt_pk_bf16_f32 v37, v38, v39")
    a(f"ds_write_b64 v17, v[36:37] offset:{L_HB}")
    a("s_waitcnt lgkmcnt(0)")
    a("s_barrier")
    if os.environ.get("TS"): stamp(a, 10)
    if "f" in TT:
        a(f"ds_read_b128 v[16:19], v16 offset:{L_HB}")
        gemv_w(a, 76, 80, 16384, 32)
        for m in range(4):
            a(f"ds_read_b64_tr_b16 v[{104+2*m}:{105+2*m}], v78 offset:{32*m}")
    a("s_cmp_ge_u32 s3, 4")
    a("s_cbranch_scc1 L_f_skip")
    if "f" not in TT: a(f"ds_read_b128 v[16:19], v16 offset:{L_HB}")
    a("v_lshlrev_b32 v6, 4, v0")
    a("s_waitcnt lgkmcnt(12)" if "f" in TT else "s_waitcnt lgkmcnt(0)")
    layernorm(a, 16, 20, 28)
    a(f"ds_write_b128 v6, v[16:19] offset:{L_XN}")
    a("L_f_skip:")
    a("s_waitcnt lgkmcnt(0)")
    a("s_barrier")
    if os.environ.get("TS"): stamp(a, 11)
    if "f" in TT:
        gemv_m(a, (36, 56), 77, 80)
    else:
        gemv_wave(a, 36, 76, 77, 40)
        gemv_wave(a, 56, 76, 77, 60, woff=16384)
    a("s_lshl_b32 s56, s3, 8"); a(f"s_add_u32 s56, s56, {L_RED}")
    a("v_lshlrev_b32 v4, 6, v2")
    a("v_lshl_add_u32 v4, v3, 4, v4")
    a("v_add_u32 v4, s56, v4")
    a("v_cmp_gt_u32 vcc, 4, v2")
    a("s_and_saveexec_b64 s[58:59], vcc")
    a("ds_write_b128 v4, v[36:39]")
    a("ds_write_b128 v4, v[56:59] offset:2048")
    a("s_mov_b64 exec, s[58:59]")
    a("s_waitcnt lgkmcnt(0)")
    a("s_barrier")
    if os.environ.get("TS"): stamp(a, 12)
    a("s_cmp_ge_u32 s3, 1")
    a("s_cbranch_scc1 L_f_skip2")
    a("v_lshlrev_b32 v4, 2, v1")
    for w in range(8):
        a(f"ds_read_b32 v{8+w}, v4 offset:{L_RED + w*256}")
        a(f"ds_read_b32 v{16+w}, v4 offset:{L_RED + 2048 + w*256}")
    a("s_waitcnt lgkmcnt(0)")
    for w in range(1, 8):
        a(f"v_add_f32 v8, v8, v{8+w}")
        a(f"v_add_f32 v16, v16, v{16+w}")
    rbf(a, 8); rbf(a, 16)
    a("v_mul_f32 v9, v8, v8")
    a("v_mul_f32 v9, 0x3d372713, v9")
    a("v_fma_f32 v9, v9, v8, v8")
    a("v_mul_f32 v9, 0xc0135761, v9")
    a("v_exp_f32 v9, v9")
    a("v_add_f32 v9, 1.0, v9")
    a("v_rcp_f32 v10, v9")
    a("v_mul_f32 v11, v8, v10")
    a("v_fma_f32 v12, -v11, v9, v8")
    a("v_fma_f32 v12, v12, v10, v11")
    a("v_cmp_gt_f32 vcc, 0x7f000000, v9")
    a("v_cndmask_b32 v11, v11, v12, vcc")
    rbf(a, 11)
    a("v_mul_f32 v11, v11, v16")
    a("v_cvt_pk_bf16_f32 v11, v11, v11")
    a("v_lshlrev_b32 v4, 1, v1")
    a(f"ds_write_b16 v4, v11 offset:{L_ACT}")
    a("L_f_skip2:")
    a("s_waitcnt lgkmcnt(0)")
    a("s_barrier")
    if os.environ.get("TS"): stamp(a, 13)
    if "f" in TT:
        a(f"ds_read_b64 v[8:9], v79 offset:{L_ACT}")
        a("s_waitcnt lgkmcnt(0)")
        for m in range(4):
            a(f"v_mfma_f32_16x16x16_bf16 v[{20+4*m}:{23+4*m}], v[{104+2*m}:{105+2*m}], v[8:9], 0")
    else:
        a("v_and_b32 v5, 3, v2")
        a("v_lshlrev_b32 v4, 5, v5")
        a("v_lshl_add_u32 v4, v3, 3, v4")
        a(f"ds_read_b64 v[8:9], v4 offset:{L_ACT}")
        a("v_lshrrev_b32 v6, 2, v2")
        a("v_lshl_add_u32 v6, v3, 2, v6")
        a("v_lshlrev_b32 v6, 10, v6")
        a("v_lshl_add_u32 v6, v5, 3, v6")
        a("s_lshl_b32 s56, s3, 7"); a(f"s_add_u32 s56, s56, {L_W3}")
        a("v_add_u32 v6, s56, v6")
        for m in range(4):
            a(f"ds_read_b64_tr_b16 v[{10+2*m}:{11+2*m}], v6 offset:{32*m}")
        a("s_waitcnt lgkmcnt(0)")
        for m in range(4):
            a(f"v_mfma_f32_16x16x16_bf16 v[{20+4*m}:{23+4*m}], v[{10+2*m}:{11+2*m}], v[8:9], 0")
    a("v_lshlrev_b32 v4, 11, v2")
    a("v_lshl_add_u32 v4, v3, 4, v4")
    a("s_lshl_b32 s56, s15, 13"); a("s_lshl_b32 s57, s3, 8"); a("s_add_u32 s56, s56, s57"); a(f"s_add_u32 s56, s56, {WS_DP}")
    for r in range(20, 36):
        a(f"v_min_u32 v{r}, -2, v{r}")
    a("v_cmp_gt_u32 vcc, 4, v2")
    a("s_and_saveexec_b64 s[58:59], vcc")
    for m in range(4):
        a(f"buffer_store_dwordx4 v[{20+4*m}:{23+4*m}], v4, s[{sWS}:{sWS+3}], s56 offen offset:{64*m} sc1")
    a("s_mov_b64 exec, s[58:59]")
    a("s_branch L_fin")

    a("L_Z:")
    a("v_and_b32 v4, 31, v0")
    a("v_lshrrev_b32 v5, 5, v0")
    a("v_lshlrev_b32 v16, 13, v5")
    a("v_lshl_add_u32 v16, v4, 4, v16")
    a("v_lshlrev_b32 v17, 4, v4")
    a("v_lshlrev_b32 v18, 3, v4")
    a("s_lshl_b32 s57, s15, 8")
    a(f"buffer_load_dwordx2 v[6:7], v18, s[{sX}:{sX+3}], s57 offen")
    a("s_mov_b32 s62, 0")
    a("L_z1:")
    a("s_lshl_b32 s63, s15, 9"); a(f"s_add_u32 s63, s63, {WS_AO}")
    for k in range(8):
        a(f"buffer_load_dwordx4 v[{36+4*k}:{39+4*k}], v17, s[{sWS}:{sWS+3}], s63 offen sc1")
        if k < 7: a("s_add_u32 s63, s63, 8192")
    a("s_waitcnt vmcnt(0)")
    sent_check(a, range(36, 68), 10)
    poll_tail(a, "L_z1", sleep=4)
    for k in range(1, 8):
        for c in range(4):
            a(f"v_add_f32 v{36+c}, v{36+c}, v{36+4*k+c}")
    for c in range(4): rbf(a, 36+c)
    a("v_lshlrev_b32 v40, 16, v6"); a("v_and_b32 v41, 0xffff0000, v6")
    a("v_lshlrev_b32 v42, 16, v7"); a("v_and_b32 v43, 0xffff0000, v7")
    for c in range(4): a(f"v_add_f32 v{72+c}, v{36+c}, v{40+c}")
    for c in range(4): rbf(a, 72+c)
    stamp(a)
    if "z" in LP:
        a("s_mov_b32 s62, 0")
        a("s_lshl_b32 s63, s15, 9"); a(f"s_add_u32 s63, s63, {WS_DP + 3*16*8192}")
        a("L_z2a:")
        a(f"buffer_load_dwordx4 v[36:39], v16, s[{sWS}:{sWS+3}], s63 offen sc1")
        a("s_waitcnt vmcnt(0)")
        sent_check(a, range(36, 40), 10)
        poll_tail(a, "L_z2a", sleep=PS)
    if "z" in PP or "z" in TT:
        ZB = [36, 80, 108]
        a("s_lshl_b32 s63, s15, 9"); a(f"s_add_u32 s63, s63, {WS_DP}")
        for k in range(1, 7): a(f"s_add_u32 s{63+k}, s63, {16*8192*k}")
        def zi(t):
            for k in range(7):
                a(f"buffer_load_dwordx4 v[{ZB[t]+4*k}:{ZB[t]+4*k+3}], v16, s[{sWS}:{sWS+3}], s{63+k} offen sc1")
        def zok(t):
            for c in range(4): a(f"v_add_f32 v{28+c}, v{ZB[t]+c}, v{ZB[t]+4+c}")
            for k in range(2, 7):
                for c in range(4): a(f"v_add_f32 v{28+c}, v{28+c}, v{ZB[t]+4*k+c}")
        if "z" in PP:
            ppoll(a, "z", 3, 7, zi, lambda t: range(ZB[t], ZB[t]+28), GAP + 2, zok)
        else:
            a("s_mov_b32 s62, 0")
            a("L_z3:")
            zi(0)
            a("s_waitcnt vmcnt(0)")
            sent_check(a, range(36, 64), 10)
            poll_tail(a, "L_z3", sleep=ZS)
            zok(0)
        stamp(a)
        for c in range(4):
            a(f"v_mov_b32 v{32+c}, v{28+c}")
            a(f"v_permlane32_swap_b32 v{28+c}, v{32+c}")
        for c in range(4): a(f"v_add_f32 v{28+c}, v{28+c}, v{32+c}")
        a("s_lshl_b32 s56, s3, 9")
        a("v_add_u32 v6, s56, v17")
        a(f"ds_write_b128 v6, v[28:31] offset:{L_FIN}")
        a("s_waitcnt lgkmcnt(0)")
        a("s_barrier")
        a("s_cmp_lg_u32 s3, 0")
        a("s_cbranch_scc1 L_fin")
        for p in range(1, 8):
            a(f"ds_read_b128 v[{132+4*p}:{135+4*p}], v17 offset:{L_FIN + 512*p}")
        a("s_waitcnt lgkmcnt(0)")
        for p in range(1, 8):
            for c in range(4):
                a(f"v_add_f32 v{28+c}, v{28+c}, v{132+4*p+c}")
        for c in range(4):
            rbf(a, 28+c)
            a(f"v_add_f32 v{28+c}, v{28+c}, v{72+c}")
        a("v_cvt_pk_bf16_f32 v28, v28, v29")
        a("v_cvt_pk_bf16_f32 v29, v30, v31")
        a("s_lshl_b32 s57, s15, 8")
        a("s_mov_b32 exec_lo, -1"); a("s_mov_b32 exec_hi, 0")
        a(f"buffer_store_dwordx2 v[28:29], v18, s[{sOUT}:{sOUT+3}], s57 offen")
        a("s_mov_b64 exec, -1")
        a("s_branch L_fin")
    a("s_mov_b32 s62, 0")
    a("L_z2:")
    a("s_lshl_b32 s63, s15, 9"); a(f"s_add_u32 s63, s63, {WS_DP}")
    for k in range(7):
        a(f"buffer_load_dwordx4 v[{36+4*k}:{39+4*k}], v16, s[{sWS}:{sWS+3}], s63 offen sc1")
        if k < 6: a(f"s_add_u32 s63, s63, {16*8192}")
    a("s_waitcnt vmcnt(0)")
    sent_check(a, range(36, 64), 10)
    poll_tail(a, "L_z2", sleep=ZS)
    stamp(a)
    for k in range(1, 7):
        for c in range(4):
            a(f"v_add_f32 v{36+c}, v{36+c}, v{36+4*k+c}")
    a("v_lshlrev_b32 v6, 4, v0")
    a(f"ds_write_b128 v6, v[36:39] offset:{L_FIN}")
    a("s_waitcnt lgkmcnt(0)")
    a("s_barrier")
    a("s_cmp_lg_u32 s3, 0")
    a("s_cbranch_scc1 L_fin")
    for p in range(16):
        a(f"ds_read_b128 v[{80+4*p}:{83+4*p}], v17 offset:{L_FIN + 512*p}")
    a("s_waitcnt lgkmcnt(0)")
    for p in range(1, 16):
        for c in range(4):
            a(f"v_add_f32 v{80+c}, v{80+c}, v{80+4*p+c}")
    for c in range(4):
        rbf(a, 80+c)
        a(f"v_add_f32 v{80+c}, v{80+c}, v{72+c}")
    a("v_cvt_pk_bf16_f32 v80, v80, v81")
    a("v_cvt_pk_bf16_f32 v81, v82, v83")
    a("s_lshl_b32 s57, s15, 8")
    a("s_mov_b32 exec_lo, -1"); a("s_mov_b32 exec_hi, 0")
    a(f"buffer_store_dwordx2 v[80:81], v18, s[{sOUT}:{sOUT+3}], s57 offen")
    a("s_mov_b64 exec, -1")
    a("L_fin:")
    a.dry = False
    if DRY:
        a("s_cbranch_execnz L_real")
        a("s_mov_b64 s[50:51], -1"); a("s_mov_b64 exec, -1"); a("s_mov_b32 s3, 2")
        a("s_branch L_epi1")
        a("L_real:")
    if STAMP:
        stamp_n[0] = 15
        stamp(a)
        a("s_cmp_lg_u32 s3, 0")
        a("s_cbranch_scc1 L_end")
        a("v_lshlrev_b32 v4, 2, v1")
        a("s_lshl_b32 s56, s2, 6"); a(f"s_add_u32 s56, s56, {WS_TS}")
        a("s_mov_b64 exec, 0xffff")
        a(f"buffer_store_dword v{vST}, v4, s[{sWS}:{sWS+3}], s56 offen")
    a("L_end:")
    a("s_endpgm")
    nv = NV + (1 if STAMP else 0)
    acc = (nv + 3) // 4 * 4
    desc = f""".section .rodata,"a"
.p2align 6
.amdhsa_kernel {name}
  .amdhsa_next_free_vgpr {nv}
  .amdhsa_next_free_sgpr 102
  .amdhsa_accum_offset {acc}
  .amdhsa_group_segment_fixed_size 0
  .amdhsa_kernarg_size 96
  .amdhsa_user_sgpr_count 2
  .amdhsa_user_sgpr_kernarg_segment_ptr 1
  .amdhsa_system_sgpr_workgroup_id_x 1
.end_amdhsa_kernel
"""
    body = a.finalize()
    out = HEADER + f"; @launch grid=(256,1,1) block=(576,1,1) lds={L_END}\n" + '.amdgcn_target "amdgcn-amd-amdhsa--gfx950"\n' + body + desc
    path = sys.argv[1] if len(sys.argv) > 1 else "k3.s"
    open(path, "w").write(out)
    print("wrote", path, len(out))

if __name__ == "__main__":
    main()
```
